```python
import torch

def _softmax(x, axis=-1):
    return torch.softmax(x, dim=axis)
def _gelu(x):
    return torch.nn.functional.gelu(x, approximate="tanh")
def _silu(x):
    return torch.nn.functional.silu(x)
def _sigmoid(x):
    return torch.sigmoid(x)
def _layernorm(x, axis=-1, eps=1e-5):
    m = x.mean(dim=axis, keepdim=True)
    v = x.var(dim=axis, keepdim=True, unbiased=False)
    return (x - m) / torch.sqrt(v + eps)
def _scatter_add(tgt, idx, src, axis=0):
    return tgt.clone().index_add_(axis, idx, src)
def _segment_sum(src, seg, n):
    out = torch.zeros((n,) + src.shape[1:], dtype=src.dtype)
    return out.index_add_(0, seg, src)
def _pad(x, pw):
    flat = tuple(v for pair in reversed(pw) for v in pair)
    return torch.nn.functional.pad(x, flat)

kernel_name = 'recurrent_scan__linear_kernel_hedgehog__glu_gated_swiglu__prompt'

def setup_inputs():

    _w = (lambda a: (lambda t: t.to(torch.bfloat16) if t.is_floating_point() else t)(torch.as_tensor(a)))
    def _A_setup():
        B, S, D, H = 1, 2048, 448, 16
        Dh = D // H
        return {
            "x": _w((lambda *s: torch.randn(*s, dtype=torch.bfloat16) * 0.05)(B, S, D)),
            "wqkv": _w((lambda *s: torch.randn(*s, dtype=torch.bfloat16) * 0.8)(D, 3 * D)),
            "w_phi": _w((lambda *s: torch.randn(*s, dtype=torch.bfloat16) * 0.8)(H, Dh, Dh) * (Dh ** -0.5)),
            "wo": _w((lambda *s: torch.randn(*s, dtype=torch.bfloat16) * 0.8)(D, D)),
        }
    _A_in = _A_setup()

    def _B_setup():
        B, S, D, F = 1, 2048, 448, 1792
        return {
            "x": _w((lambda *s: torch.randn(*s, dtype=torch.bfloat16) * 0.05)(B, S, D)),
            "w1": _w((lambda *s: torch.randn(*s, dtype=torch.bfloat16) * 0.2)(D, F) * (2.0 / D) ** 0.5),
            "w3": _w((lambda *s: torch.randn(*s, dtype=torch.bfloat16) * 0.2)(D, F) * (2.0 / D) ** 0.5),
            "w2": _w((lambda *s: torch.randn(*s, dtype=torch.bfloat16) * 0.2)(F, D) * (2.0 / F) ** 0.5),
        }
    _B_in = _B_setup()

    return {
        "A_x": _A_in["x"],
        "A_wqkv": _A_in["wqkv"],
        "A_w_phi": _A_in["w_phi"],
        "A_wo": _A_in["wo"],
        "B_x": _B_in["x"],
        "B_w1": _B_in["w1"],
        "B_w3": _B_in["w3"],
        "B_w2": _B_in["w2"],
    }

def reference(A_x, A_wqkv, A_w_phi, A_wo, B_x, B_w1, B_w3, B_w2):
    def _A_ref(x, wqkv, w_phi, wo):
        B, S, D = x.shape
        H = 16; Dh = D // H
        qkv = (lambda x, *d: x.permute(*d))((x @ wqkv).reshape(B, S, 3, H, Dh), 2, 0, 3, 1, 4)
        q, k, v = qkv[0], qkv[1], qkv[2]
        pq = torch.einsum("bhsd,hdf->bhsf", q, w_phi)
        pk = torch.einsum("bhsd,hdf->bhsf", k, w_phi)
        phi_q = torch.concatenate([_softmax(pq, axis=-1), _softmax(-pq, axis=-1)], axis=-1)
        phi_k = torch.concatenate([_softmax(pk, axis=-1), _softmax(-pk, axis=-1)], axis=-1)
        kv = torch.einsum("bhsf,bhsd->bhfd", phi_k, v)
        z  = torch.einsum("bhsf->bhf", phi_k)
        num = torch.einsum("bhqf,bhfd->bhqd", phi_q, kv)
        den = torch.einsum("bhqf,bhf->bhq", phi_q, z)[..., None] + 1e-6
        o = num / den
        return (lambda x, *d: x.permute(*d))(o, 0, 2, 1, 3).reshape(B, S, D) @ wo

    def _B_ref(x, w1, w3, w2):
        gate = torch.einsum("bsd,df->bsf", x, w1)
        up = torch.einsum("bsd,df->bsf", x, w3)
        h = _silu(gate) * up
        out = torch.einsum("bsf,fd->bsd", h, w2)
        return out

    x = A_x
    xn = _layernorm(x, axis=-1)
    s = _A_ref(xn, A_wqkv, A_w_phi, A_wo)
    g = _silu(_B_ref(xn, B_w1, B_w3, B_w2))
    return x + s * g
```

```python
import re


class Reg:
    __slots__ = ("k", "i", "n")

    def __init__(self, k, i, n=1):
        self.k, self.i, self.n = k, i, n

    def __str__(self):
        if self.k in ("vcc", "m0", "exec", "scc"):
            return self.k
        if self.n == 1:
            return f"{self.k}{self.i}"
        return f"{self.k}[{self.i}:{self.i + self.n - 1}]"

    __repr__ = __str__

    def regs(self):
        if self.k in ("m0", "scc"):
            return [(self.k, 0)]
        if self.k in ("vcc", "exec"):
            return [(self.k, 0), (self.k, 1)]
        return [(self.k, self.i + j) for j in range(self.n)]

    def __getitem__(self, idx):
        if isinstance(idx, slice):
            start = idx.start or 0
            stop = idx.stop if idx.stop is not None else self.n
            assert 0 <= start < stop <= self.n, (self, idx)
            return Reg(self.k, self.i + start, stop - start)
        assert 0 <= idx < self.n, (self, idx)
        return Reg(self.k, self.i + idx, 1)


def v(i, n=1):
    return Reg("v", i, n)


def a(i, n=1):
    return Reg("a", i, n)


def s(i, n=1):
    return Reg("s", i, n)


VCC = Reg("vcc", 0, 2)
M0 = Reg("m0", 0, 1)
EXEC = Reg("exec", 0, 2)
SCC = Reg("scc", 0, 1)

TRANS = ("v_exp_f32", "v_log_f32", "v_rcp_f32", "v_rsq_f32", "v_sqrt_f32", "v_sin_f32", "v_cos_f32")
RMW = ("v_fmac_f32", "v_dot2c_f32_bf16", "v_fmac_f32_e64")
VOP3_ONLY = ("v_fma_f32", "v_max3_f32", "v_min3_f32", "v_cvt_pk_bf16_f32", "v_dot2_f32_bf16", "v_perm_b32",
             "v_lshl_add_u32", "v_add3_u32", "v_mad_u32_u24", "v_mul_lo_u32", "v_and_or_b32", "v_lshl_or_b32",
             "v_bfe_u32", "v_pk_mul_f32", "v_pk_add_f32", "v_pk_fma_f32", "v_accvgpr_read_b32",
             "v_accvgpr_write_b32", "v_add_lshl_u32", "v_xad_u32", "v_med3_f32", "v_bfi_b32", "v_mul_hi_u32",
             "v_alignbit_b32")


def is_literal(x):
    if isinstance(x, Reg):
        return False
    if isinstance(x, float):
        return x not in (0.0, 0.5, 1.0, 2.0, 4.0, -0.5, -1.0, -2.0, -4.0)
    if isinstance(x, int):
        return not (-16 <= x <= 64)
    if isinstance(x, str):
        return False
    raise ValueError(x)


def fmt(x):
    if isinstance(x, Reg):
        return str(x)
    if isinstance(x, float):
        if is_literal(x):
            import struct
            return "0x%08x" % struct.unpack("<I", struct.pack("<f", x))[0]
        return repr(x)
    if isinstance(x, int):
        if is_literal(x):
            return "0x%x" % (x & 0xFFFFFFFF)
        return str(x)
    return str(x)


class Neg:
    def __init__(self, r):
        self.r = r

    def __str__(self):
        return "-" + str(self.r)


class Ins:
    __slots__ = ("op", "text", "kind", "reads", "writes", "size", "tag", "meta")

    def __init__(self, op, text, kind, reads, writes, size, tag=None, meta=None):
        self.op, self.text, self.kind = op, text, kind
        self.reads, self.writes, self.size = reads, writes, size
        self.tag, self.meta = tag, meta or {}

    def __repr__(self):
        return self.text


def _regs(ops):
    out = []
    for o in ops:
        if isinstance(o, Neg):
            o = o.r
        if isinstance(o, Reg):
            out += o.regs()
    return out


class Stream:
    def __init__(self):
        self.ins = []

    def add(self, i):
        self.ins.append(i)
        return i

    def extend(self, other):
        self.ins.extend(other.ins if isinstance(other, Stream) else other)

    def __len__(self):
        return len(self.ins)

    def op(self, op, *ops, mods=""):
        txt_ops = ", ".join((str(o) if isinstance(o, Neg) else fmt(o)) for o in ops)
        text = f"{op} {txt_ops}" + (f" {mods}" if mods else "")
        lit = any(is_literal(o) for o in ops if not isinstance(o, Neg))
        if op.startswith("s_"):
            kind = "salu"
            if op.startswith("s_cmp") or op.startswith("s_bitcmp"):
                reads, writes = _regs(ops), SCC.regs()
            else:
                reads, writes = _regs(ops[1:]), _regs(ops[:1])
                if op in ("s_cselect_b32", "s_cselect_b64", "s_addc_u32", "s_subb_u32"):
                    reads += SCC.regs()
                if op in ("s_add_u32", "s_sub_u32", "s_addc_u32", "s_and_b32", "s_or_b32", "s_lshl_b32",
                          "s_lshr_b32", "s_xor_b32", "s_and_b64", "s_or_b64", "s_lshr_b64", "s_bfe_u32",
                          "s_add_i32", "s_min_u32", "s_max_u32", "s_andn2_b64", "s_subb_u32", "s_lshl_b64",
                          "s_bcnt1_i32_b64", "s_and_saveexec_b64", "s_xor_b64", "s_sub_i32"):
                    writes += SCC.regs()
                if op == "s_and_saveexec_b64":
                    reads += EXEC.regs()
                    writes += EXEC.regs()
            size = 8 if lit else 4
            return self.add(Ins(op, text, kind, reads, writes, size))
        base = op.replace("_e64", "").replace("_e32", "").replace("_dpp", "").replace("_sdwa", "")
        kind = "valu"
        if base in TRANS:
            kind = "trans"
        if base.startswith("v_dot2"):
            kind = "dot"
        reads, writes = _regs(ops[1:]), _regs(ops[:1])
        if base in RMW:
            reads += _regs(ops[:1])
        if base == "v_permlane32_swap_b32":
            reads = _regs(ops)
            writes = _regs(ops)
            kind = "permlane"
        if base == "v_cndmask_b32" and len(ops) == 3:
            reads += VCC.regs()
        if base in ("v_readfirstlane_b32", "v_readlane_b32"):
            kind = "readlane"
        meta = {}
        if op.endswith("_dpp"):
            meta["dpp"] = True
        has_sgpr_src = sum(1 for o in ops[1:] if (isinstance(o, Reg) and o.k == "s"))
        size = 4
        if base in VOP3_ONLY or op.endswith("_e64") or op.endswith("_dpp") or op.endswith("_sdwa") or lit:
            size = 8
        if any(isinstance(o, Neg) for o in ops):
            size = 8
        if base.startswith("v_cmp") and not (isinstance(ops[0], Reg) and ops[0].k == "vcc"):
            size = 8
        if size == 4 and len(ops) == 3 and not base.startswith("v_cmp") and kind in ("valu", "dot"):
            if not (isinstance(ops[2], Reg) and ops[2].k == "v"):
                size = 8
        if base in VOP3_ONLY:
            assert not lit, text
        return self.add(Ins(op, text, kind, reads, writes, size, meta=meta))

    def mfma(self, d, A, B, C, shape="32x32x16"):
        op = {"32x32x16": "v_mfma_f32_32x32x16_bf16", "16x16x32": "v_mfma_f32_16x16x32_bf16"}[shape]
        passes = {"32x32x16": 8, "16x16x32": 4}[shape]
        text = f"{op} {d}, {A}, {B}, {fmt(C)}"
        reads = _regs([A, B, C])
        return self.add(Ins(op, text, "mfma", reads, _regs([d]), 8,
                            meta={"passes": passes, "A": _regs([A]), "B": _regs([B]), "C": _regs([C]),
                                  "Cexact": (C.k, C.i, C.n) if isinstance(C, Reg) else None,
                                  "D": (d.k, d.i, d.n)}))

    def ds_read(self, op, d, addr, offset=0, tag=None, mods=""):
        assert 0 <= offset < 65536, offset
        text = f"{op} {d}, {addr}" + (f" offset:{offset}" if offset else "") + (f" {mods}" if mods else "")
        return self.add(Ins(op, text, "ds_read", _regs([addr]), _regs([d]), 8, tag=tag))

    def ds_read2st64(self, d, addr, o0, o1, tag=None):
        text = f"ds_read2st64_b32 {d}, {addr} offset0:{o0} offset1:{o1}"
        return self.add(Ins("ds_read2st64_b32", text, "ds_read", _regs([addr]), _regs([d]), 8, tag=tag))

    def ds_write(self, op, addr, data, offset=0, tag=None):
        assert 0 <= offset < 65536, offset
        text = f"{op} {addr}, {data}" + (f" offset:{offset}" if offset else "")
        return self.add(Ins(op, text, "ds_write", _regs([addr, data]), [], 8, tag=tag))

    def buf_load(self, op, d, voff, srd, soff=0, offset=0, mods="", tag=None):
        assert 0 <= offset < 4096, offset
        vo = f"{voff}" if voff is not None else "off"
        text = f"{op} {d}, {vo}, {srd}, {fmt(soff)}" + (" offen" if voff is not None else "") + \
               (f" offset:{offset}" if offset else "") + (f" {mods}" if mods else "")
        rd = _regs([srd, soff] + ([voff] if voff is not None else []))
        meta = {}
        if op.endswith("d16_hi") or op.endswith("d16"):
            rd += _regs([d])
        return self.add(Ins(op, text, "vm_load", rd, _regs([d]), 8, tag=tag, meta=meta))

    def dma(self, voff, srd, soff=0, offset=0, mods="", tag=None, op="buffer_load_dwordx4"):
        assert 0 <= offset < 4096, offset
        text = f"{op} {voff}, {srd}, {fmt(soff)} offen" + (f" offset:{offset}" if offset else "") + \
               (f" {mods}" if mods else "") + " lds"
        return self.add(Ins(op, text, "dma", _regs([voff, srd, soff, M0]), [], 8, tag=tag))

    def buf_store(self, op, data, voff, srd, soff=0, offset=0, mods="", tag=None):
        assert 0 <= offset < 4096, offset
        text = f"{op} {data}, {voff}, {srd}, {fmt(soff)} offen" + (f" offset:{offset}" if offset else "") + \
               (f" {mods}" if mods else "")
        wide = data.n >= 3
        return self.add(Ins(op, text, "vm_store", _regs([data, voff, srd, soff]), [], 8, tag=tag,
                            meta={"wide": wide, "data": _regs([data])}))

    def raw(self, text, size=4, kind="ctrl", reads=(), writes=()):
        return self.add(Ins(text.split()[0], text, kind, list(reads), list(writes), size))

    def label(self, name):
        return self.add(Ins("label", name + ":", "label", [], [], 0))

    def align8(self):
        return self.add(Ins("align", "", "align", [], [], 0))

    def comment(self, t):
        return self.add(Ins("comment", "; " + t, "comment", [], [], 0))

    def barrier(self):
        return self.add(Ins("s_barrier", "s_barrier", "barrier", [], [], 4))

    def wait_vm_tag(self, *tags):
        return self.add(Ins("waittag", "", "waittag", [], [], 0, meta={"vm": set(tags)}))

    def wait_lgkm_tag(self, *tags):
        return self.add(Ins("waittag", "", "waittag", [], [], 0, meta={"lgkm": set(tags)}))

    def wait_all(self, vm=True, lgkm=True):
        return self.add(Ins("waitall", "", "waitall", [], [], 0, meta={"vm": vm, "lgkm": lgkm}))

    def nop(self, n=1):
        while n > 0:
            k = min(n, 16)
            self.add(Ins("s_nop", f"s_nop {k - 1}", "nop", [], [], 4, meta={"states": k}))
            n -= k

    def begin_role(self, brtext, label, reads=()):
        self.add(Ins("role_begin", f"{brtext} {label}", "role_begin", list(reads), [], 4, meta={"label": label}))

    def end_role(self, label):
        self.add(Ins("role_end", label + ":", "role_end", [], [], 0, meta={"label": label}))

    def mark_vm(self, name):
        self.add(Ins("mark", "", "mark", [], [], 0, meta={"name": name}))

    def wait_vm_since(self, name):
        self.add(Ins("waitmark", "", "waitmark", [], [], 0, meta={"name": name}))

    def fence(self, vm=True, lgkm=False):
        self.add(Ins("fence", "", "fence", [], [], 0, meta={"vm": vm, "lgkm": lgkm}))


VALU_KINDS = ("valu", "trans", "dot", "permlane", "readlane")


class State:
    def __init__(self):
        self.vmq = []
        self.lgq = []
        self.nvm = 0
        self.marks = {}

    def clone(self):
        c = State()
        c.vmq = list(self.vmq)
        c.lgq = list(self.lgq)
        c.nvm = self.nvm
        c.marks = dict(self.marks)
        return c


def finalize(stream, align8=True, verbose=False):
    out = []
    st = State()
    role_stack = []
    haz_stack = []
    pos = 0
    lastw = {}
    lastC = {}
    laststore = {}
    stats = {"nop_states": 0, "waits": 0}

    def emit(i):
        nonlocal pos
        out.append(i)
        if i.kind == "nop":
            pos += i.meta["states"]
        elif i.kind in ("label", "comment", "role_end"):
            pass
        else:
            pos += 1

    def need_wait(vm_n, lg_n):
        parts = []
        if vm_n is not None:
            parts.append(f"vmcnt({min(vm_n, 63)})")
        if lg_n is not None:
            parts.append(f"lgkmcnt({min(lg_n, 15)})")
        if parts:
            emit(Ins("s_waitcnt", "s_waitcnt " + " ".join(parts), "wait", [], [], 4))
            stats["waits"] += 1

    def queue_wait(q, pred):
        k = -1
        for idx, e in enumerate(q):
            if pred(e):
                k = idx
        if k < 0:
            return None
        n = len(q) - 1 - k
        del q[:k + 1]
        return n

    for ins in stream.ins:
        kind = ins.kind
        if kind == "waittag":
            vm_n = lg_n = None
            if "vm" in ins.meta:
                vm_n = queue_wait(st.vmq, lambda e: e["tag"] in ins.meta["vm"])
            if "lgkm" in ins.meta:
                lg_n = queue_wait(st.lgq, lambda e: e["tag"] in ins.meta["lgkm"])
            need_wait(vm_n, lg_n)
            continue
        if kind == "waitall":
            vm_n = lg_n = None
            if ins.meta["vm"]:
                vm_n = 0
                st.vmq = []
            if ins.meta["lgkm"]:
                lg_n = 0
                st.lgq = []
            need_wait(vm_n, lg_n)
            continue
        if kind == "fence":
            if ins.meta["vm"]:
                st.vmq = []
            if ins.meta["lgkm"]:
                st.lgq = []
            continue
        if kind == "mark":
            st.marks[ins.meta["name"]] = st.nvm
            continue
        if kind == "waitmark":
            n = st.nvm - st.marks[ins.meta["name"]]
            if n < 63:
                need_wait(n, None)
                keep = min(n, len(st.vmq))
                st.vmq = st.vmq[len(st.vmq) - keep:] if keep else []
            continue
        if kind == "role_begin":
            emit(ins)
            role_stack.append(st.clone())
            haz_stack.append((pos, {k: list(x) for k, x in lastw.items()}, {k: list(x) for k, x in lastC.items()},
                              {k: list(x) for k, x in laststore.items()}))
            continue
        if kind == "role_end":
            saved = role_stack.pop()
            marks = st.marks
            for e in st.vmq + st.lgq:
                if e.get("inrole") == len(role_stack) + 1 and e["writes"]:
                    raise RuntimeError(f"role block {ins.meta['label']} leaves a register load in flight: {e}")
            st = saved
            for k_, v_ in marks.items():
                st.marks.setdefault(k_, min(v_, st.nvm))
            emit(ins)
            pos0, sw, sc, ss = haz_stack.pop()
            L = pos - pos0
            for cur, snap in ((lastw, sw), (lastC, sc), (laststore, ss)):
                for r, ents in snap.items():
                    shifted = [((e[0] + L,) + tuple(e[1:])) for e in ents if pos0 - e[0] < 24]
                    keep = [e for e in cur.get(r, []) if e[0] > pos0]
                    cur[r] = keep + shifted
            continue
        if kind in ("label", "comment"):
            emit(ins)
            continue
        if kind == "align":
            out.append(ins)
            continue

        rd, wr = set(ins.reads), set(ins.writes)
        touch = rd | wr
        vm_n = queue_wait(st.vmq, lambda e: e["writes"] & touch)
        lg_n = queue_wait(st.lgq, lambda e: e["writes"] & touch)
        need_wait(vm_n, lg_n)

        need = 0

        def req(prev_pos, states):
            nonlocal need
            gap = pos - prev_pos - 1
            if gap < states:
                need = max(need, states - gap)

        is_valu = kind in VALU_KINDS
        for r, w in [(r, w) for r in rd for w in lastw.get(r, [])]:
            wpos, wkind, wmeta = w
            if wkind == "mfma":
                table = {8: (0, 10, 12, 12), 4: (0, 6, 8, 8)}[wmeta["passes"]]
                if kind == "mfma":
                    if r in ins.meta["C"] and r not in ins.meta["A"] and r not in ins.meta["B"]:
                        if ins.meta["Cexact"] == wmeta["D"] and ins.meta["passes"] == wmeta["passes"]:
                            req(wpos, table[0])
                        else:
                            req(wpos, table[1])
                    else:
                        req(wpos, table[2])
                else:
                    req(wpos, table[3])
            elif wkind in VALU_KINDS:
                if r[0] in ("v", "a"):
                    if kind == "mfma":
                        req(wpos, 2)
                    if ins.meta.get("dpp"):
                        req(wpos, 2)
                    if kind == "permlane":
                        req(wpos, 2)
                    if kind == "readlane":
                        req(wpos, 1)
                    if wkind == "trans" and is_valu and kind != "trans":
                        req(wpos, 1)
                    if wkind == "trans" and kind == "trans":
                        req(wpos, 1)
                    if wkind == "dot":
                        same = (wmeta.get("op") == ins.op)
                        if same and ins.op in RMW and r in wr:
                            pass
                        else:
                            req(wpos, 3)
                else:
                    if is_valu:
                        req(wpos, 2)
                    if kind in ("vm_load", "vm_store", "dma"):
                        req(wpos, 5)
                    if kind == "readlane":
                        req(wpos, 4)
            elif wkind == "salu":
                if r == ("m0", 0) and kind == "dma":
                    req(wpos, 1)
        for r in wr:
            for w in lastw.get(r, []):
                wpos, wkind, wmeta = w
                if wkind == "mfma" and kind != "mfma":
                    req(wpos, {8: 12, 4: 8}[wmeta["passes"]])
                if wkind == "mfma" and kind == "mfma":
                    if not (ins.meta["Cexact"] == wmeta["D"]):
                        req(wpos, {8: 10, 4: 6}[wmeta["passes"]])
                if wkind == "dot" and not (wmeta.get("op") == ins.op and ins.op in RMW):
                    req(wpos, 3)
            for c in lastC.get(r, []):
                if kind != "mfma":
                    req(c[0], {8: 7, 4: 3}[c[1]])
            for sp in laststore.get(r, []):
                req(sp[0], 2 if is_valu else 1)
        if need:
            stats["nop_states"] += need
            n = need
            while n > 0:
                k = min(n, 16)
                emit(Ins("s_nop", f"s_nop {k - 1}", "nop", [], [], 4, meta={"states": k}))
                n -= k

        mypos = pos
        emit(ins)
        for r in wr:
            meta = dict(ins.meta)
            meta["op"] = ins.op
            lastw[r] = [(mypos, kind, meta)]
        if kind == "mfma":
            for r in ins.meta["C"]:
                lastC[r] = [(mypos, ins.meta["passes"])]
        if kind == "vm_store" and ins.meta.get("wide"):
            for r in ins.meta["data"]:
                laststore[r] = [(mypos,)]
        inrole = len(role_stack) if role_stack else None
        if kind in ("vm_load", "dma", "vm_store"):
            st.vmq.append({"writes": wr if kind == "vm_load" else set(), "tag": ins.tag, "inrole": inrole})
            if not role_stack:
                st.nvm += 1
            else:
                st.nvm += 1
            assert len(st.vmq) <= 63 or True
        if kind in ("ds_read", "ds_write"):
            st.lgq.append({"writes": wr, "tag": ins.tag, "inrole": inrole})

    lines = []
    fix_sizes(out)
    if align8:
        off = 0
        res = []
        for idx, i in enumerate(out):
            if i.kind == "align":
                if off % 8 == 4:
                    res.append(Ins("s_nop", "s_nop 0", "nop", [], [], 4, meta={"states": 1}))
                    off += 4
                continue
            if i.size == 8 and off % 8 == 4:
                done = False
                j = len(res) - 1
                while j >= 0 and res[j].size in (0, 4):
                    p = res[j]
                    if p.size == 4 and p.kind in ("valu", "trans") and promotable(p):
                        parts = p.text.split(" ", 1)
                        res[j] = Ins(p.op + "_e64", parts[0] + "_e64 " + parts[1], p.kind, p.reads, p.writes, 8,
                                     meta=p.meta)
                        done = True
                        break
                    if p.kind in ("label", "role_end", "role_begin"):
                        break
                    j -= 1
                if not done:
                    res.append(Ins("s_nop", "s_nop 0", "nop", [], [], 4, meta={"states": 1}))
                    stats["align_nops"] = stats.get("align_nops", 0) + 1
                off += 4
            res.append(i)
            off += i.size
        out = res
    for i in out:
        if i.text:
            lines.append(i.text if i.kind in ("label", "role_end") else "    " + i.text)
    stats["bytes"] = sum(i.size for i in out)
    stats["n"] = sum(1 for i in out if i.size)
    return lines, stats


def promotable(p):
    t = p.text
    op = p.op
    if op.endswith(("_e64", "_dpp", "_sdwa")):
        return False
    if op in ("v_readfirstlane_b32", "v_nop", "v_dot2c_f32_bf16", "v_permlane32_swap_b32"):
        return False
    if op.startswith("v_cmp"):
        return False
    if op in ("v_cndmask_b32", "v_fmac_f32"):
        return False
    return True


def interleave(main, fillers, every=1, per=None, start=0):
    out = []
    f = list(fillers)
    fi = 0
    nm = sum(1 for i in main if i.kind == "mfma")
    left = nm
    seen = 0
    for i in main:
        out.append(i)
        if i.kind == "mfma":
            seen += 1
            if seen > start:
                remaining = len(f) - fi
                k = per if per is not None else -(-remaining // max(left, 1))
                for _ in range(min(k, remaining)):
                    out.append(f[fi])
                    fi += 1
            left -= 1
    out.extend(f[fi:])
    return out


_size_cache = {}


def fix_sizes(inss):
    import subprocess
    todo = []
    for i in inss:
        if i.kind in ("label", "comment", "role_end", "align") or not i.text:
            continue
        t = i.text
        if i.kind == "role_begin" or t.startswith(("s_cbranch", "s_branch")):
            i.size = 4
            continue
        if t not in _size_cache:
            todo.append(t)
    todo = list(dict.fromkeys(todo))
    if todo:
        src = "\n".join(todo) + "\n"
        r = subprocess.run(["llvm-mc", "-triple=amdgcn-amd-amdhsa", "-mcpu=gfx950", "-show-encoding"],
                           input=src, capture_output=True, text=True)
        if r.returncode != 0:
            print(r.stderr[:3000])
            raise SystemExit("llvm-mc failed")
        encs = [l for l in r.stdout.splitlines() if "encoding:" in l]
        assert len(encs) == len(todo), (len(encs), len(todo))
        for t, l in zip(todo, encs):
            _size_cache[t] = l.split("encoding:")[1].count("0x")
    for i in inss:
        if i.kind in ("label", "comment", "role_end") or not i.text:
            continue
        if i.kind == "role_begin" or i.text.startswith(("s_cbranch", "s_branch")):
            continue
        i.size = _size_cache[i.text]
```

```python
import sys, os, struct
from asmgen import *

KNAME = "recurrent_scan__linear_kernel_hedgehog__glu_gated_swiglu__prompt"

class Opt:
    debug = False
    stop_after = None
    align8 = True
    stamps = False
    lnfast = False
    nopround = False
OPT = Opt()

WS_H = 0
WS_O = 0x700000
WS_KV = 0x900000
WS_ST = 0x920000
WS_DUMP = 0x1000000
WS_SIZE = 268435456

sWG = s(2)
SX, SQKV, SW1, SW3 = s(28, 4), s(32, 4), s(36, 4), s(40, 4)
SW2, SWO, SPHI, SOUT = s(44, 4), s(48, 4), s(52, 4), s(56, 4)
SWS, SDBG = s(60, 4), s(64, 4)
SWH = s(4, 4)
sW, sTg, sCh, sR, sM, sTy = s(68), s(69), s(70), s(71), s(72), s(73)
sCk = [s(74 + i) for i in range(7)]
sSelLo, sSelHi, sOnes, sHi, sL, sNL = s(81), s(82), s(83), s(84), s(85), s(86)
sWK = s(87)
sLineA, sLineB = s(88), s(89)
sHst = s(90)
sStat = s(91)
sT0, sT1, sT2, sT3 = s(92), s(93), s(94), s(95)
sP2 = s(96)
sTb, sCb = s(97), s(98)
sRole = s(99)
sSpin = s(100)
sIdx = s(101)
sKq, sU, sHld, sW2o, sOld, sPoll = s(8), s(9), s(10), s(11), s(12), s(13)
sE0, sE1 = s(14, 2), s(16, 2)
sDmp = s(18)
sStamp = s(20, 2)

STG = [0, 16384]
AUX = 32768
RING = 49152
PHI_IMG = 0
V_IMG = 32768
LDS_BYTES = 163840

vL = v(1)
vL16 = v(2)
vStW = v(3)
vStR = [v(4), v(5), v(6), v(7)]
vQ = v(8)
vDq = v(9)
vD1, vD3 = v(10), v(11)
vF = [v(12), v(13)]
vDh, vFh = v(14), v(15)
vMask, vOne, vM01 = v(16), v(17), v(18)
vL4 = v(19)
vT0, vT1, vT2, vT3 = v(20), v(21), v(22), v(23)
XRAW = 24
POOL = 80

LOG2E = 1.4426950408889634


def X(sig, i):
    return v(XRAW + 28 * sig + 4 * i, 4)


def xn(step):
    return a(4 * step, 4)


class Gen:
    def __init__(self):
        self.S = Stream()
        self.nlabel = 0
        self.dumps = []

    def lab(self, base):
        self.nlabel += 1
        return f"L_{base}_{self.nlabel}"


def groups_of(stream):
    return [[i] for i in stream.ins]


def weave(slots, fillers, first=0):
    out = []
    n = len(slots)
    tot = sum(len(g) for g in fillers)
    fi = 0
    done = 0
    for k, sl in enumerate(slots):
        out.extend(sl)
        if k < first:
            continue
        goal = tot * (k + 1 - first) / max(n - first, 1)
        while fi < len(fillers) and done < goal - 1e-9:
            out.extend(fillers[fi])
            done += len(fillers[fi])
            fi += 1
    while fi < len(fillers):
        out.extend(fillers[fi])
        fi += 1
    return out


def dma_group(voff, srd, soff_ins, soff, lds_addr_const, tag, wave_term=sWK, mods=""):
    S = Stream()
    for fn in soff_ins:
        fn(S)
    if wave_term is None:
        S.op("s_mov_b32", M0, lds_addr_const)
    else:
        S.op("s_add_u32", M0, wave_term, lds_addr_const)
    S.dma(voff, srd, soff, tag=tag, mods=mods)
    return S.ins


def dump(G, S, name, regs, role=None):
    if not OPT.debug:
        return
    base = WS_DUMP + sum(d[1] * 256 * 8 * 256 for d in G.dumps)
    n = len(regs)
    G.dumps.append((name, n, base))
    S.op("s_lshl_b32", sDmp, sWG, 3)
    S.op("s_add_u32", sDmp, sDmp, sW)
    S.op("s_mul_i32", sDmp, sDmp, n * 256)
    S.op("s_add_u32", sDmp, sDmp, base)
    for k, r in enumerate(regs):
        S.buf_store("buffer_store_dword", r, vL4, SWS, sDmp, tag="dump")
        S.op("s_add_u32", sDmp, sDmp, 256)
    S.wait_vm_tag("dump")


WS_STAMP = 0x0A00000


def stamp(S, k):
    if not OPT.stamps:
        return
    S.raw("s_memrealtime s[20:21]", size=8, kind="smem")
    S.raw("s_waitcnt lgkmcnt(0)", kind="wait")
    S.fence(vm=False, lgkm=True)
    S.raw(f"v_writelane_b32 v0, s20, {k}", size=8, kind="valu", writes=[("v", 0)])


def cstamp(S, k):
    if not OPT.stamps:
        return
    S.raw("s_memtime s[20:21]", size=8, kind="smem")
    S.raw("s_waitcnt lgkmcnt(0)", kind="wait")
    S.fence(vm=False, lgkm=True)
    S.raw(f"v_writelane_b32 v0, s20, {k}", size=8, kind="valu", writes=[("v", 0)])


def stamp_flush(S):
    if not OPT.stamps:
        return
    S.op("s_lshl_b32", sT1, sWG, 3)
    S.op("s_add_u32", sT1, sT1, sW)
    S.op("s_lshl_b32", sT1, sT1, 8)
    S.op("s_add_u32", sT1, sT1, WS_STAMP)
    S.nop(2)
    S.buf_store("buffer_store_dword", v(0), vL4, SWS, sT1, tag="stamp")
    S.wait_vm_tag("stamp")


def reglist(r):
    return [r[i] for i in range(r.n)]


def prologue(G):
    S = G.S
    S.op("s_cmp_ge_u32", sWG, 256)
    S.raw("s_cbranch_scc1 L_END", reads=SCC.regs())
    if OPT.stamps:
        S.raw("s_memrealtime s[26:27]", size=8, kind="smem")
    S.raw("s_load_dwordx16 s[4:19], s[0:1], 0", size=8, kind="smem")
    S.raw("s_load_dwordx4 s[20:23], s[0:1], 64", size=8, kind="smem")
    S.raw("s_load_dwordx2 s[24:25], s[0:1], 80", size=8, kind="smem")
    S.op("v_and_b32", vL, 63, v(0))
    S.op("v_lshrrev_b32", vT0, 6, v(0))
    S.op("v_lshlrev_b32", vL16, 4, vL)
    S.op("v_readfirstlane_b32", sW, vT0)
    S.op("v_lshlrev_b32", vL4, 2, vL)
    S.op("s_and_b32", sT0, sWG, 7)
    S.op("s_lshr_b32", sIdx, sWG, 3)
    S.op("s_lshr_b32", sT1, sT0, 2)
    S.op("s_lshl_b32", sT1, sT1, 3)
    S.op("s_lshr_b32", sT2, sIdx, 2)
    S.op("s_add_u32", sR, sT1, sT2)
    S.op("s_and_b32", sT1, sT0, 3)
    S.op("s_lshl_b32", sT1, sT1, 1)
    S.op("s_bfe_u32", sT3, sIdx, 0x10001)
    S.op("s_add_u32", sM, sT1, sT3)
    S.op("s_and_b32", sTy, sIdx, 1)
    S.op("s_and_b32", sTg, sW, 3)
    S.op("s_lshr_b32", sCh, sW, 2)
    S.op("s_lshl_b32", sWK, sW, 10)
    S.op("s_cmp_eq_u32", sT2, 7)
    S.op("s_cselect_b32", sT2, 0, sT2)
    for i in range(7):
        S.op("s_add_u32", sCk[i], sT2, i)
        S.op("s_cmp_ge_u32", sCk[i], 7)
        S.op("s_cselect_b32", sT1, 7, 0)
        S.op("s_sub_u32", sCk[i], sCk[i], sT1)
    S.op("s_mul_i32", sT1, sIdx, 37)
    S.op("s_lshr_b32", sT1, sT1, 8)
    S.op("s_mul_i32", sT2, sT1, 7)
    S.op("s_sub_u32", sCb, sIdx, sT2)
    S.op("s_lshl_b32", sT2, sT0, 2)
    S.op("s_add_u32", sTb, sT2, sT1)
    S.op("s_cmp_lt_u32", sIdx, 28)
    S.op("s_cselect_b32", sP2, 1, 0)
    S.op("s_lshl_b32", sT1, sR, 7)
    S.op("s_lshl_b32", sT2, sW, 4)
    S.op("s_add_u32", sT1, sT1, sT2)
    S.op("v_lshrrev_b32", vT0, 3, vL)
    S.op("v_add_u32", vT1, sT1, vT0)
    S.op("v_mul_u32_u24", vT1, 896, vT1)
    S.op("v_and_b32", vT2, 7, vL)
    S.op("v_lshl_add_u32", vT1, vT2, 4, vT1)
    S.op("v_add_u32", vT3, 7168, vT1)
    S.raw("s_waitcnt lgkmcnt(0)", kind="wait")
    if OPT.stamps:
        S.raw("v_writelane_b32 v0, s26, 0", size=8, kind="valu", writes=[("v", 0)])
    srd(S, SX, s(4, 2), 2048 * 896)
    for i in range(7):
        S.op("s_lshl_b32", s(26), sCk[i], 7)
        S.buf_load("buffer_load_dwordx4", X(0, i), vT1, SX, s(26), tag="x")
        S.buf_load("buffer_load_dwordx4", X(1, i), vT3, SX, s(26), tag="x")
    srd(S, SQKV, s(6, 2), 448 * 2688)
    srd(S, SPHI, s(8, 2), 16 * 1568)
    srd(S, SWO, s(10, 2), 448 * 896)
    srd(S, SW1, s(14, 2), 448 * 3584)
    srd(S, SW3, s(16, 2), 448 * 3584)
    srd(S, SW2, s(18, 2), 1792 * 896)
    srd(S, SOUT, s(20, 2), 2048 * 896)
    srd(S, SDBG, s(22, 2), 256)
    srd(S, SWS, s(24, 2), WS_SIZE)
    S.op("s_cmp_eq_u32", sP2, 0)
    S.op("s_cselect_b32", SW2[2], 0, SW2[2])
    S.op("s_cselect_b32", SWO[2], 0, SWO[2])
    S.op("s_mov_b32", sSelLo, 0x00003F80)
    S.op("s_mov_b32", sSelHi, 0x3F800000)
    S.op("s_mov_b32", sOnes, 0x3F803F80)
    S.op("s_mov_b32", sHi, 0xFFFF0000)
    S.op("s_mov_b32", sL, LOG2E)
    S.op("s_mov_b32", sNL, -LOG2E)
    S.op("s_lshl_b32", sT1, sR, 3)
    S.op("s_add_u32", sT1, sT1, sM)
    S.op("s_lshl_b32", sT1, sT1, 1)
    S.op("s_add_u32", sT1, sT1, sTy)
    S.op("s_lshl_b32", sT1, sT1, 7)
    S.op("s_add_u32", sStat, sT1, WS_ST)
    S.op("s_lshl_b32", sT1, sR, 2)
    S.op("s_add_u32", sT1, sT1, sTg)
    S.op("s_mul_i32", sHst, sT1, 112 * 1024)
    S.op("s_mul_i32", sT1, sM, 448)
    S.op("s_and_b32", sT2, sM, 1)
    S.op("s_lshl_b32", sT3, sTy, 1)
    S.op("s_add_u32", sT2, sT2, sT3)
    tabA = [256, 64, 0, 192]
    tabB = [384, 0, 128, 320]
    for dst, tab in ((sLineA, tabA), (sLineB, tabB)):
        S.op("s_mov_b32", dst, tab[0])
        for k in (1, 2, 3):
            S.op("s_cmp_eq_u32", sT2, k)
            S.op("s_cselect_b32", dst, tab[k], dst)
        S.op("s_add_u32", dst, dst, sT1)
    lane_patterns(S)
    stamp(S, 1)


def srd(S, d, ptr, nbytes):
    S.op("s_mov_b32", d[0], ptr[0])
    S.op("s_mov_b32", d[1], ptr[1])
    S.op("s_mov_b32", d[2], nbytes)
    S.op("s_mov_b32", d[3], 0x20000)


def lane_patterns(S):
    t0, t1, t2, t3 = vT0, vT1, vT2, vT3
    p0, p1, p2, p3, p4, p5 = [v(POOL + i) for i in range(6)]
    row, pos, hf, rr, cc, g0 = p0, p1, p2, p3, p4, p5
    S.op("v_lshrrev_b32", row, 3, vL)
    S.op("v_and_b32", pos, 7, vL)
    S.op("v_lshrrev_b32", hf, 5, vL)
    S.op("v_bfe_u32", rr, vL, 2, 2)
    S.op("v_and_b32", cc, 3, vL)
    S.op("v_bfe_u32", g0, vL, 4, 1)
    S.op("s_lshr_b32", sT1, sW, 1)
    S.op("s_lshl_b32", sT1, sT1, 12)
    S.op("s_and_b32", sT2, sW, 1)
    S.op("s_lshl_b32", sT2, sT2, 8)
    S.op("s_add_u32", sT1, sT1, sT2)
    S.op("v_xor_b32", t0, row, pos)
    S.op("v_lshlrev_b32", t0, 4, t0)
    S.op("v_and_b32", t1, 1, pos)
    S.op("v_lshl_add_u32", t0, t1, 9, t0)
    S.op("v_lshrrev_b32", t1, 1, pos)
    S.op("v_lshl_add_u32", t0, t1, 10, t0)
    S.op("v_add_u32", vStW, sT1, t0)
    S.op("s_lshl_b32", sT1, sTg, 12)
    for k in range(4):
        S.op("v_add_u32", t0, 2 * k, hf)
        S.op("v_xor_b32", t0, t0, vL)
        S.op("v_lshlrev_b32", t0, 4, t0)
        S.op("v_add_u32", t0, sT1, t0)
        S.op("v_add_u32", vStR[k], 1024 * k, t0)
    r16, sw = v(POOL + 6), v(POOL + 7)
    S.op("v_lshl_add_u32", r16, hf, 3, rr)
    S.op("v_lshrrev_b32", sw, 1, rr)
    S.op("v_xor_b32", t0, sCh, sw)
    S.op("v_lshlrev_b32", t0, 6, t0)
    S.op("v_lshl_add_u32", t0, r16, 7, t0)
    S.op("v_lshl_add_u32", t0, g0, 5, t0)
    S.op("v_lshl_add_u32", vQ, cc, 3, t0)
    S.op("v_lshl_or_b32", t1, g0, 1, sw)
    S.op("s_lshl_b32", sT1, sCh, 1)
    for e in range(2):
        S.op("s_add_u32", sT2, sT1, e)
        S.op("v_xor_b32", t0, sT2, t1)
        S.op("v_lshlrev_b32", t0, 5, t0)
        S.op("v_lshl_add_u32", t0, r16, 7, t0)
        S.op("v_lshl_add_u32", t0, g0, 13, t0)
        S.op("v_lshl_add_u32", vF[e], cc, 3, t0)
    S.op("v_xor_b32", t0, sCh, g0)
    S.op("v_lshlrev_b32", t0, 5, t0)
    S.op("v_lshl_add_u32", t0, r16, 6, t0)
    S.op("v_lshl_add_u32", t0, g0, 12, t0)
    S.op("v_lshl_add_u32", vFh, cc, 3, t0)
    rsw = v(POOL + 8)
    S.op("v_bfe_u32", rsw, row, 1, 1)
    S.op("s_lshl_b32", sT1, sW, 3)
    S.op("v_add_u32", t0, sT1, row)
    S.op("v_mul_u32_u24", t2, 2688, t0)
    S.op("v_bfe_u32", t1, vL, 2, 1)
    S.op("v_xor_b32", t1, t1, rsw)
    S.op("v_mul_u32_u24", t1, 56, t1)
    S.op("v_add_u32", t2, t2, t1)
    S.op("v_lshl_add_u32", t2, cc, 4, t2)
    S.op("s_mul_i32", sT2, sM, 112)
    S.op("v_add_u32", vDq, sT2, t2)
    S.op("v_mul_u32_u24", t2, 3584, t0)
    S.op("v_lshlrev_b32", t1, 1, rsw)
    S.op("v_xor_b32", t1, t1, pos)
    S.op("v_lshl_add_u32", vD1, t1, 4, t2)
    S.op("v_xor_b32", vD3, 64, vD1)
    S.op("s_lshl_b32", sT1, sTg, 4)
    S.op("v_lshrrev_b32", t0, 2, vL)
    S.op("v_add_u32", t0, sT1, t0)
    S.op("v_mul_u32_u24", t0, 3584, t0)
    S.op("s_lshl_b32", sT1, sCh, 1)
    S.op("v_xor_b32", t1, sT1, cc)
    S.op("v_lshl_add_u32", vDh, t1, 4, t0)
    S.op("v_sub_u32", t0, hf, 1)
    S.op("v_mov_b32", vMask, t0)
    S.op("v_and_b32", vM01, 1.0, vMask)
    S.op("v_xor_b32", vOne, 1.0, vM01)
    S.op("v_lshl_or_b32", t0, g0, 2, cc)
    S.op("v_min_u32", t0, 6, t0)
    S.op("v_lshlrev_b32", t0, 3, t0)
    S.op("v_lshl_add_u32", t1, hf, 2, rr)
    S.op("v_mul_u32_u24", t1, 56, t1)
    S.op("v_add_u32", t0, t0, t1)
    S.op("s_mul_i32", sT1, sCh, 1568)
    S.op("s_add_u32", sT1, sT1, AUX)
    S.op("v_add_u32", vPhiAddr, sT1, t0)


vPhiAddr = v(POOL + 63)
vPhiA = v(POOL + 52, 8)


def g_qkv(i, matoff, lds, tag):
    return dma_group(vDq, SQKV,
                     [lambda S: S.op("s_mul_i32", sT0, sCk[i], 64 * 2688)] +
                     ([lambda S: S.op("s_add_u32", sT0, sT0, matoff)] if matoff else []),
                     sT0, lds, tag)


def g_line(i, sLine, lds, tag):
    g1 = dma_group(vD1, SW1, [lambda S: S.op("s_mul_i32", sT0, sCk[i], 64 * 3584),
                              lambda S: S.op("s_add_u32", sT0, sT0, sLine)], sT0, lds, tag)
    g3 = dma_group(vD3, SW3, [lambda S: S.op("s_mul_i32", sT0, sCk[i], 64 * 3584),
                              lambda S: S.op("s_add_u32", sT0, sT0, sLine)], sT0, lds + 8192, tag)
    return [g1, g3]


def g_half(i, sLine, lds, tag):
    return dma_group(vDh, SWH, [lambda S: S.op("s_mul_i32", sT0, sCk[i], 64 * 3584),
                                lambda S: S.op("s_add_u32", sT0, sT0, sLine)], sT0, lds, tag)


vSum = [v(POOL + 48), v(POOL + 49)]
vSq = [v(POOL + 50), v(POOL + 51)]
vNegm = vSum
vRstd = vSq
LNT = [v(POOL + 40 + i) for i in range(8)]


def ln_stats(S):
    for sg in range(2):
        S.op("v_mov_b32", vSum[sg], 0)
        S.op("v_mov_b32", vSq[sg], 0)
    for i in range(7):
        for q in range(4):
            for sg in range(2):
                S.op("v_dot2c_f32_bf16", vSum[sg], sOnes, X(sg, i)[q])
                S.op("v_dot2c_f32_bf16", vSq[sg], X(sg, i)[q], X(sg, i)[q])
    for mods in ("quad_perm:[1,0,3,2] row_mask:0xf bank_mask:0xf", "quad_perm:[2,3,0,1] row_mask:0xf bank_mask:0xf",
                 "row_half_mirror row_mask:0xf bank_mask:0xf"):
        for r in (vSum[0], vSq[0], vSum[1], vSq[1]):
            S.op("v_add_f32_dpp", r, r, r, mods=mods)
    t = LNT
    for sg in range(2):
        S.op("v_mul_f32", vSum[sg], -1.0 / 448, vSum[sg])
        S.op("v_mul_f32", vSq[sg], 1.0 / 448, vSq[sg])
    for sg in range(2):
        S.op("v_fma_f32", vSq[sg], Neg(vSum[sg]), vSum[sg], vSq[sg])
        S.op("v_cvt_pk_bf16_f32", t[sg], vSum[sg], vSum[sg])
    for sg in range(2):
        S.op("v_max_f32", vSq[sg], 0, vSq[sg])
        S.op("v_and_b32", vNegm[sg], sHi, t[sg])
    for sg in range(2):
        S.op("v_cvt_pk_bf16_f32", t[sg], vSq[sg], vSq[sg])
    for sg in range(2):
        S.op("v_and_b32", t[sg], sHi, t[sg])
    for sg in range(2):
        S.op("v_add_f32", t[sg], 1e-5, t[sg])
    for sg in range(2):
        S.op("v_cvt_pk_bf16_f32", t[sg], t[sg], t[sg])
    for sg in range(2):
        S.op("v_and_b32", t[sg], sHi, t[sg])
    for sg in range(2):
        S.op("v_sqrt_f32", t[sg], t[sg])
    for sg in range(2):
        S.op("v_cvt_pk_bf16_f32", t[sg], t[sg], t[sg])
    for sg in range(2):
        S.op("v_and_b32", t[sg], sHi, t[sg])
    for sg in range(2):
        S.op("v_rcp_f32", vRstd[sg], t[sg])
    if OPT.lnfast:
        for sg in range(2):
            S.op("v_mul_f32", vNegm[sg], vNegm[sg], vRstd[sg])


def ln_norm(i):
    S = Stream()
    t = LNT
    for sg in range(2):
        P = X(sg, i)
        if OPT.lnfast:
            for q in range(4):
                S.op("v_lshlrev_b32", t[2 * q], 16, P[q])
                S.op("v_and_b32", t[2 * q + 1], sHi, P[q])
            for q in range(8):
                S.op("v_fma_f32", t[q], t[q], vRstd[sg], vNegm[sg])
            for q in range(4):
                S.op("v_cvt_pk_bf16_f32", P[q], t[2 * q], t[2 * q + 1])
            S.ds_write("ds_write_b128", vStW, P, offset=STG[i & 1] + 128 * sg, tag="stg")
            continue
        for q in range(4):
            S.op("v_dot2_f32_bf16", t[2 * q], P[q], sSelLo, vNegm[sg])
            S.op("v_dot2_f32_bf16", t[2 * q + 1], P[q], sSelHi, vNegm[sg])
        for q in range(4):
            S.op("v_cvt_pk_bf16_f32", P[q], t[2 * q], t[2 * q + 1])
        for q in range(4):
            S.op("v_lshlrev_b32", t[2 * q], 16, P[q])
            S.op("v_and_b32", t[2 * q + 1], sHi, P[q])
        for q in range(4):
            S.op("v_mul_f32", t[2 * q], t[2 * q], vRstd[sg])
            S.op("v_mul_f32", t[2 * q + 1], t[2 * q + 1], vRstd[sg])
        for q in range(4):
            S.op("v_cvt_pk_bf16_f32", P[q], t[2 * q], t[2 * q + 1])
        S.ds_write("ds_write_b128", vStW, P, offset=STG[i & 1] + 128 * sg, tag="stg")
    return S


class Tile:
    def __init__(self, acc, pat, tmps, slot, extra, kstride, rd2):
        self.acc, self.pat, self.tmps, self.slot = acc, pat, tmps, slot
        self.extra, self.kstride, self.rd2 = extra, kstride, rd2


def frag_reads(S, dst, tile, chunk, kappa, state, tag=None):
    key = (tile.pat.i, tile.tmps[0].i, chunk)
    addr = tile.tmps[chunk & 1]
    if key not in state["addr"]:
        state["addr"].add(key)
        S.op("v_add_u32", addr, tile.slot(chunk), tile.pat)
    off = tile.extra + kappa * tile.kstride
    S.ds_read("ds_read_b64_tr_b16", dst[0:2], addr, offset=off, tag=tag)
    S.ds_read("ds_read_b64_tr_b16", dst[2:4], addr, offset=off + tile.rd2, tag=tag)


def pass_slots(tiles, ring, chunks, first_chunk_zero, lookahead, visible, state):
    nt = len(tiles)
    seq = [(c, k, t) for c in chunks for k in range(4) for t in range(nt)]
    allseq = state["seq"]
    slots = []
    for (c, k, t) in seq:
        j = state["m"]
        S = Stream()
        while state["r"] <= min(j + lookahead, len(allseq) - 1) and visible(allseq[state["r"]][0]):
            cc_, kk, tt = allseq[state["r"]]
            frag_reads(S, ring[state["r"] % len(ring)], tiles[tt], cc_, kk, state)
            state["r"] += 1
        assert state["r"] > j, "fragment not read yet"
        tile = tiles[t]
        C = 0 if (c == first_chunk_zero and k == 0) else tile.acc
        S.mfma(tile.acc, ring[j % len(ring)], xn(4 * c + k), C)
        state["m"] += 1
        slots.append(S.ins)
    return slots


def new_pass_state(tiles, chunks):
    nt = len(tiles)
    return {"seq": [(c, k, t) for c in chunks for k in range(4) for t in range(nt)], "m": 0, "r": 0, "addr": set()}


def features(acc, kb, p, sc, phi, wA):
    S = Stream()
    for j in range(12, 16):
        S.op("v_and_b32", acc[j], vMask, acc[j])
    for q in range(8):
        S.op("v_cvt_pk_bf16_f32", kb[q], acc[2 * q], acc[2 * q + 1])
    S.mfma(p, wA[0:4], kb[0:4], 0)
    S.mfma(p, wA[4:8], kb[4:8], p)
    mark = len(S)
    if not OPT.nopround:
        for q in range(8):
            S.op("v_cvt_pk_bf16_f32", kb[q], p[2 * q], p[2 * q + 1])
        for q in range(8):
            S.op("v_lshlrev_b32", p[2 * q], 16, kb[q])
            S.op("v_and_b32", p[2 * q + 1], sHi, kb[q])
    mx, mn, t0, t1, sp, sm, ip2, im2 = [sc[i] for i in range(8)]
    S.op("v_max3_f32", mx, p[0], p[1], p[2])
    S.op("v_min3_f32", mn, p[0], p[1], p[2])
    for j in range(3, 15, 2):
        S.op("v_max3_f32", mx, mx, p[j], p[j + 1])
        S.op("v_min3_f32", mn, mn, p[j], p[j + 1])
    S.op("v_max_f32", mx, mx, p[15])
    S.op("v_min_f32", mn, mn, p[15])
    S.op("v_mov_b32", t0, mx)
    S.op("v_mov_b32", t1, mn)
    S.op("v_permlane32_swap_b32", mx, t0)
    S.op("v_permlane32_swap_b32", mn, t1)
    S.op("v_max_f32", mx, mx, t0)
    S.op("v_min_f32", mn, mn, t1)
    S.op("v_mul_f32", mx, sNL, mx)
    S.op("v_mul_f32", mn, sL, mn)
    E = acc
    for j in range(16):
        S.op("v_fma_f32", E[j], p[j], sL, mx)
        S.op("v_fma_f32", p[j], p[j], sNL, mn)
        S.op("v_exp_f32", E[j], E[j])
        S.op("v_exp_f32", p[j], p[j])
    S.op("v_add_f32", sp, E[12], E[13])
    S.op("v_add_f32", sm, p[12], p[13])
    S.op("v_add_f32", t0, E[14], E[15])
    S.op("v_add_f32", t1, p[14], p[15])
    S.op("v_add_f32", sp, sp, t0)
    S.op("v_add_f32", sm, sm, t1)
    S.op("v_fma_f32", sp, sp, vM01, E[0])
    S.op("v_fma_f32", sm, sm, vM01, p[0])
    S.op("v_add_f32", t0, E[1], E[2])
    S.op("v_add_f32", t1, p[1], p[2])
    for j in range(3, 12, 2):
        if j + 1 < 12:
            S.op("v_add_f32", sp, sp, E[j])
            S.op("v_add_f32", sm, sm, p[j])
            S.op("v_add_f32", t0, t0, E[j + 1])
            S.op("v_add_f32", t1, t1, p[j + 1])
        else:
            S.op("v_add_f32", sp, sp, E[j])
            S.op("v_add_f32", sm, sm, p[j])
    S.op("v_add_f32", sp, sp, t0)
    S.op("v_add_f32", sm, sm, t1)
    S.op("v_mov_b32", t0, sp)
    S.op("v_mov_b32", t1, sm)
    S.op("v_permlane32_swap_b32", sp, t0)
    S.op("v_permlane32_swap_b32", sm, t1)
    S.op("v_add_f32", sp, sp, t0)
    S.op("v_add_f32", sm, sm, t1)
    S.op("v_rcp_f32", sp, sp)
    S.op("v_rcp_f32", sm, sm)
    S.op("v_mul_f32", ip2, sp, vM01)
    S.op("v_mul_f32", im2, sm, vM01)
    for j in range(16):
        S.op("v_mul_f32", E[j], E[j], sp if j < 12 else ip2)
        S.op("v_mul_f32", p[j], p[j], sm if j < 12 else im2)
    for q in range(8):
        S.op("v_cvt_pk_bf16_f32", phi[q], E[2 * q], E[2 * q + 1])
    for q in range(8):
        S.op("v_cvt_pk_bf16_f32", phi[8 + q], p[2 * q], p[2 * q + 1])
    return S


def silu_tile(acc, tmp, hb, ustore):
    S = Stream()
    for j in range(8):
        S.op("v_mul_f32", tmp[j], sNL, acc[j])
    for j in range(8):
        S.op("v_exp_f32", tmp[j], tmp[j])
    for j in range(8):
        S.op("v_mul_f32", acc[j], acc[j], acc[8 + j])
    for j in range(8):
        S.op("v_add_f32", tmp[j], 1.0, tmp[j])
    for j in range(8):
        S.op("v_rcp_f32", tmp[j], tmp[j])
    for j in range(8):
        S.op("v_mul_f32", acc[j], acc[j], tmp[j])
    for q in range(4):
        S.op("v_cvt_pk_bf16_f32", hb[q], acc[2 * q], acc[2 * q + 1])
    ustore(S, hb)
    return S


def h_store(sLine, e_units):
    def f(S, hb):
        S.op("s_lshl_b32", sT1, sLine, 5)
        S.op("s_add_u32", sT1, sT1, sHst)
        mul, add = e_units
        if mul:
            S.op("s_mul_i32", sT2, sCh, mul * 1024)
            S.op("s_add_u32", sT1, sT1, sT2)
        if add:
            S.op("s_add_u32", sT1, sT1, add * 1024)
        S.buf_store("buffer_store_dwordx4", hb, vL16, SWS, sT1, mods="sc1", tag="hst")
    return f


def one_lane(S, fn):
    S.op("s_mov_b64", EXEC, 1)
    fn(S)
    S.op("s_mov_b64", EXEC, -1)


def stage_flag(S, value):
    S.op("v_mov_b32", vT0, value)
    S.op("s_lshl_b32", sT1, sW, 2)
    S.op("s_add_u32", sT1, sT1, sStat)
    S.op("v_mov_b32", vT1, 0)
    one_lane(S, lambda S: S.buf_store("buffer_store_dword", vT0, vT1, SWS, sT1, mods="sc1", tag="flag"))


def poll_loop(G, S, voff, srd, soff, cmp_op, cmp_val, mask, tmp):
    lab = G.lab("poll")
    done = lab + "_done"
    S.op(cmp_op, VCC, cmp_val, tmp)
    S.nop(1)
    S.raw(f"s_and_b32 s{sT1.i}, vcc_lo, 0x{mask:x}", size=8, kind="salu", reads=VCC.regs(), writes=sT1.regs() + SCC.regs())
    S.op("s_cmp_eq_u32", sT1, mask)
    S.begin_role("s_cbranch_scc1", done, reads=SCC.regs())
    S.op("s_mov_b32", sSpin, 200000)
    S.label(lab)
    S.raw("s_sleep 1", kind="ctrl")
    S.buf_load("buffer_load_dword", tmp, voff, srd, soff, mods="sc1")
    S.raw("s_waitcnt vmcnt(0)", kind="wait")
    S.fence(vm=True)
    S.op(cmp_op, VCC, cmp_val, tmp)
    S.nop(1)
    S.raw(f"s_and_b32 s{sT1.i}, vcc_lo, 0x{mask:x}", size=8, kind="salu", reads=VCC.regs(), writes=sT1.regs() + SCC.regs())
    S.op("s_cmp_eq_u32", sT1, mask)
    S.raw(f"s_cbranch_scc1 {done}", reads=SCC.regs())
    S.op("s_sub_u32", sSpin, sSpin, 1)
    S.op("s_cmp_lg_u32", sSpin, 0)
    S.raw(f"s_cbranch_scc1 {lab}", reads=SCC.regs())
    S.end_role(done)


def zero_init(G, S, typeA):
    lab = G.lab("zero")
    S.op("s_cmp_lg_u32", sW, 0)
    S.begin_role("s_cbranch_scc1", lab, reads=SCC.regs())
    z = v(POOL + 12, 4)
    for j in range(4):
        S.op("v_mov_b32", z[j], 0)
    S.op("s_mov_b64", EXEC, 0xFF)
    S.buf_store("buffer_store_dwordx4", z, vL16, SWS, sStat, mods="sc1", tag="zero")
    S.op("s_mov_b64", EXEC, -1)
    if typeA:
        S.op("v_lshrrev_b32", vT0, 5, vL)
        S.op("v_lshlrev_b32", vT0, 13, vT0)
        S.op("v_and_b32", vT2, 31, vL)
        S.op("v_lshl_add_u32", vT0, vT2, 4, vT0)
        S.op("s_lshl_b32", sT1, sM, 14)
        S.op("s_lshl_b32", sT2, sR, 9)
        S.op("s_add_u32", sT1, sT1, sT2)
        S.op("s_add_u32", sT1, sT1, WS_KV)
        S.buf_store("buffer_store_dwordx4", z, vT0, SWS, sT1, mods="sc1", tag="zero")
    S.mark_vm("zero")
    S.end_role(lab)


def zero_signal(G, S):
    lab = G.lab("zsig")
    S.op("s_cmp_lg_u32", sW, 0)
    S.begin_role("s_cbranch_scc1", lab, reads=SCC.regs())
    S.wait_vm_since("zero")
    S.op("v_mov_b32", vT0, 1)
    S.op("v_mov_b32", vT1, 0)
    S.op("s_and_b32", sT1, sWG, 3)
    S.op("s_lshl_b32", sT1, sT1, 6)
    one_lane(S, lambda S: S.buf_store("buffer_atomic_add", vT0, vT1, SDBG, sT1, tag="zat"))
    S.end_role(lab)


vZpoll = v(POOL + 62)
vZoff = v(POOL + 61)


def z_poll_issue(S, tmp, off):
    S.op("v_lshlrev_b32", off, 6, vL)
    S.buf_load("buffer_load_dword", tmp, off, SDBG, 0, mods="sc1", tag="zp")


def z_poll_check(G, S, tmp, off):
    poll_loop(G, S, off, SDBG, 0, "v_cmp_le_u32", 64, 0xF, tmp)


def p1_common_start(G, typeA):
    S = G.S
    S.op("s_and_b32", sT1, sW, 3)
    S.op("s_lshl_b32", s(27), sT1, 10)
    S.op("v_add_u32", vT2, s(27), vL16)
    S.op("s_mul_i32", sT0, sM, 2 * 1568)
    S.extend(dma_group(vT2, SPHI, [], sT0, AUX, "phi", wave_term=s(27)))


def phase1(G, typeA):
    S = G.S
    P = POOL
    zero_init(G, S, typeA)
    p1_common_start(G, typeA)
    if typeA:
        slot = lambda j: RING + 16384 * j
        accK, accV = v(P, 16), v(P + 16, 16)
        ringP1 = [v(P + 32, 4), v(P + 36, 4)]
        for j in range(7):
            S.extend(g_qkv(j, 896, slot(j), f"w{j}"))
            S.extend(g_qkv(j, 1792, slot(j) + 8192, f"w{j}"))
        tilesP1 = [Tile(accK, vQ, [vT2, vT3], slot, 0, 2048, 512),
                   Tile(accV, vQ, [vT2, vT3], slot, 8192, 2048, 512)]
    else:
        qslot = lambda j: RING + 8192 * j
        p2slot = {0: RING + 57344, 1: RING + 57344 + 16384, 2: RING + 57344 + 32768, 3: RING, 4: RING + 16384,
                  5: RING + 32768, 6: STG[1]}
        accQ = v(P, 16)
        ringP1 = [v(P + 32, 4), v(P + 36, 4)]
        for j in range(7):
            S.extend(g_qkv(j, 0, qslot(j), f"w{j}"))
        for j in range(3):
            for g in g_line(j, sLineA, p2slot[j], f"a{j}"):
                S.extend(g)
        tilesP1 = [Tile(accQ, vQ, [vT2, vT3], qslot, 0, 2048, 512)]
    if typeA:
        S.op("s_cmp_eq_u32", sCh, 0)
        for k in range(4):
            S.op("s_cselect_b32", SWH[k], SW1[k], SW3[k]) if k < 3 else S.op("s_mov_b32", SWH[3], 0x20000)
    stamp(S, 2)
    ln_stats(S)
    stamp(S, 3)
    S.extend(ln_norm(0))
    dump(G, S, "stats", [vNegm[0], vRstd[0], vNegm[1], vRstd[1]])
    S.wait_vm_tag("w0", "phi")
    S.wait_lgkm_tag("stg")
    S.barrier()
    stamp(S, 4)
    cstamp(S, 20)
    for k in range(2):
        for rd in range(2):
            S.ds_read("ds_read_b64_tr_b16", vPhiA[4 * k + 2 * rd:4 * k + 2 * rd + 2], vPhiAddr,
                      offset=896 * k + 448 * rd)
    st = new_pass_state(tilesP1, range(7))
    for i in range(7):
        for k in range(4):
            S.ds_read("ds_read_b128", xn(4 * i + k), vStR[k], offset=STG[i & 1])
        slots = pass_slots(tilesP1, ringP1, [i], 0, 1, lambda c: c <= i, st)
        fill = []
        if i + 1 < 7:
            fill += groups_of(ln_norm(i + 1))
        dm = []
        if typeA:
            if i >= 1:
                dm += g_line(i - 1, sLineA, slot(i - 1), f"a{i - 1}")
        else:
            if i == 2:
                dm += g_line(3, sLineA, p2slot[3], "a3")
            if i == 4:
                dm += g_line(4, sLineA, p2slot[4], "a4")
            if i == 6:
                dm += g_line(5, sLineA, p2slot[5], "a5") + g_line(6, sLineA, p2slot[6], "a6")
        if i == 1:
            Z = Stream()
            zero_signal(G, Z)
            dm.append(Z.ins)
        if i == 5:
            Z = Stream()
            z_poll_issue(Z, vZpoll, vZoff)
            dm.append(Z.ins)
        head = fill[:24]
        S.extend(slots[0][:-1])
        slots[0] = slots[0][-1:]
        for g in dm:
            S.extend(g)
        for g in head:
            S.extend(g)
        S.extend(weave(slots, fill[24:]))
        if i == 6:
            z_poll_check(G, S, vZpoll, vZoff)
        if i + 1 < 7:
            S.wait_vm_tag(f"w{i + 1}")
            S.wait_lgkm_tag("stg")
        else:
            S.wait_vm_tag("a0", "a1")
        S.barrier()
        cstamp(S, 21 + i)
    if OPT.debug:
        tmp = v(P + 40, 4)
        for stp in (0, 5, 27):
            for q in range(4):
                S.op("v_accvgpr_read_b32", tmp[q], xn(stp)[q])
            dump(G, S, f"xn{stp}", reglist(tmp))
        dump(G, S, "acc0", reglist(v(P, 16)))
        if typeA:
            dump(G, S, "acc1", reglist(v(P + 16, 16)))
        else:
            dump(G, S, "acc1", reglist(v(P, 16)))
    if OPT.stop_after == "p1":
        return
    stamp(S, 5)
    if typeA:
        phase1A_rest(G, slot, accK, accV)
    else:
        phase1B_rest(G, p2slot, accQ)


def phase1A_rest(G, slot, accK, accV):
    S = G.S
    P = POOL
    XR = XRAW
    acc2 = [v(XR, 16), v(XR + 16, 16)]
    ring = [v(XR + 32 + 4 * i, 4) for i in range(4)]
    kb = v(XR + 48, 8)
    p = v(P + 32, 16)
    sc = v(P + 44 + 4, 4)
    sc = [v(P + 48), v(P + 49), v(P + 50), v(P + 51), v(P + 60), v(P + 61), v(P + 62), v(P + 63)]
    tiles = [Tile(acc2[e], vF[e], [vStR[2 * e], vStR[2 * e + 1]], slot, 0, 2048, 512) for e in range(2)]
    Fv = Stream()
    for j in range(12, 16):
        Fv.op("v_and_b32", accV[j], vMask, accV[j])
    Fv.op("v_or_b32", accV[12], vOne, accV[12])
    vb = p[0:8]
    for q in range(8):
        Fv.op("v_cvt_pk_bf16_f32", vb[q], accV[2 * q], accV[2 * q + 1])
    Fv.op("v_and_b32", vT0, 31, vL)
    Fv.op("v_bfe_u32", vT1, vL, 1, 3)
    Fv.op("v_lshrrev_b32", vT2, 5, vL)
    Fv.op("v_xor_b32", vT1, vT1, vT2)
    Fv.op("v_lshlrev_b32", vT1, 3, vT1)
    Fv.op("v_lshl_add_u32", vT1, vT0, 6, vT1)
    Fv.op("s_lshl_b32", sT1, sCh, 13)
    Fv.op("s_lshl_b32", sT2, sTg, 11)
    Fv.op("s_add_u32", sT1, sT1, sT2)
    Fv.op("s_add_u32", sT1, sT1, V_IMG)
    Fv.op("v_add_u32", vT1, sT1, vT1)
    for i in range(4):
        Fv.op("v_xor_b32", vT3, 16 * i, vT1)
        Fv.ds_write("ds_write_b64", vT3, vb[2 * i:2 * i + 2], tag="img")
    phi = accV
    Fk = features(accK, kb, p, sc, phi, vPhiA)
    Fw = Stream()
    Fw.op("v_and_b32", vT0, 31, vL)
    Fw.op("v_and_b32", vT1, 15, vL)
    Fw.op("v_lshrrev_b32", vT2, 5, vL)
    Fw.op("v_xor_b32", vT1, vT1, vT2)
    Fw.op("v_lshlrev_b32", vT1, 3, vT1)
    Fw.op("v_lshl_add_u32", vT1, vT0, 7, vT1)
    Fw.op("s_lshl_b32", sT1, sCh, 14)
    Fw.op("s_lshl_b32", sT2, sTg, 12)
    Fw.op("s_add_u32", sT1, sT1, sT2)
    Fw.op("s_add_u32", sT1, sT1, PHI_IMG)
    Fw.op("v_add_u32", vT1, sT1, vT1)
    for T in range(2):
        for i in range(4):
            Fw.op("v_xor_b32", vT3, (8 * T + 2 * i) * 8, vT1)
            Fw.ds_write("ds_write_b64", vT3, phi[8 * T + 2 * i:8 * T + 2 * i + 2], tag="img")
    fill = groups_of(Fv) + groups_of(Fk) + groups_of(Fw)
    if OPT.debug:
        D = Stream()
        dump(G, D, "phi", reglist(phi))
        fill.append(D.ins)
    nfill_ep = 4
    per = -(-len(fill) // nfill_ep)
    st = new_pass_state(tiles, range(7))
    acc3 = accK
    for i in range(7):
        slots = pass_slots(tiles, ring, [i], 0, 3, lambda c: c <= i + 1, st)
        f = fill[i * per:(i + 1) * per] if i < nfill_ep else []
        dm = []
        if i == 0:
            dm += g_line(6, sLineA, slot(6), "a6")
        if i >= 1:
            dm.append(g_half(i - 1, sLineB, slot(i - 1), f"b{i - 1}"))
        if i == 4:
            K_ = Stream()
            kv_gemm(G, K_)
            f = [K_.ins]
        for g in dm:
            S.extend(g)
        S.extend(weave(slots, f))
        if i + 2 < 7:
            S.wait_vm_tag(f"a{i + 2}")
        if i == nfill_ep - 1:
            S.wait_lgkm_tag("img")
        if i == 6:
            S.wait_vm_tag("b0", "b1")
        S.barrier()
        cstamp(S, 28 + i)
    stamp(S, 6)
    S.extend(g_half(6, sLineB, slot(6), "b6"))
    if OPT.debug:
        dump(G, S, "acc2", reglist(acc2[0]) + reglist(acc2[1]))
    tiles3 = [Tile(acc3, vFh, [vStR[0], vStR[1]], slot, 0, 1024, 256)]
    tmp = p[0:8]
    hb = [p[8:12], p[12:16]]
    F = Stream()
    for e in range(2):
        F.extend(silu_tile(acc2[e], tmp, hb[e], h_store(sLineA, (2, e))))
    fill = groups_of(F)
    per = -(-len(fill) // 4)
    st = new_pass_state(tiles3, range(7))
    for i in range(7):
        slots = pass_slots(tiles3, ring, [i], 0, 3, lambda c: c <= i + 1, st)
        f = fill[i * per:(i + 1) * per] if i < 4 else []
        S.extend(weave(slots, f))
        if i == 1:
            kv_flag(G, S)
        if i == 5:
            S.wait_vm_tag("hst")
            stage_flag(S, 1)
        if i + 2 < 7:
            S.wait_vm_tag(f"b{i + 2}")
        S.barrier()
        cstamp(S, 35 + i)
    stamp(S, 7)
    S.extend(silu_tile(acc3, tmp, hb[0], h_store(sLineB, (1, 0))))
    S.wait_vm_tag("hst")
    stage_flag(S, 2)


def kv_gemm(G, S):
    P = POOL
    lab = G.lab("kv")
    S.op("s_lshr_b32", sT1, sTg, 1)
    S.op("s_cmp_lg_u32", sT1, sCh)
    S.begin_role("s_cbranch_scc1", lab, reads=SCC.regs())
    D = v(P, 16)
    A = [v(P + 32, 4), v(P + 36, 4)]
    B = [v(P + 40, 4), v(P + 44, 4)]
    aA0, aA1, aB0, aB1 = vT0, vT1, vT2, vT3
    t0, t1, t2 = v(P + 48), v(P + 49), v(P + 50)
    S.op("v_bfe_u32", t0, vL, 2, 2)
    S.op("v_lshrrev_b32", t1, 5, vL)
    S.op("v_lshl_add_u32", t0, t1, 2, t0)
    S.op("v_bfe_u32", t1, vL, 4, 1)
    S.op("v_and_b32", t2, 3, vL)
    S.op("v_lshl_add_u32", t1, t1, 2, t2)
    S.op("s_and_b32", sT1, sTg, 1)
    S.op("s_lshl_b32", sT1, sT1, 3)
    S.op("v_add_u32", t2, sT1, t1)
    S.op("v_xor_b32", t2, t2, t0)
    S.op("v_lshlrev_b32", t2, 3, t2)
    S.op("v_lshl_add_u32", t2, t0, 7, t2)
    S.op("s_lshl_b32", sT2, sCh, 14)
    S.op("v_add_u32", aA0, sT2, t2)
    S.op("v_xor_b32", aA1, 64, aA0)
    S.op("v_lshrrev_b32", t2, 1, t0)
    S.op("v_xor_b32", t2, t2, t1)
    S.op("v_lshlrev_b32", t2, 3, t2)
    S.op("v_lshl_add_u32", t2, t0, 6, t2)
    S.op("s_lshl_b32", sT2, sCh, 13)
    S.op("s_add_u32", sT2, sT2, V_IMG)
    S.op("v_add_u32", aB0, sT2, t2)
    S.op("v_xor_b32", aB1, 32, aB0)
    for k in range(8):
        aa, bb = A[k & 1], B[k & 1]
        S.ds_read("ds_read_b64_tr_b16", aa[0:2], aA0, offset=PHI_IMG + 2048 * k)
        S.ds_read("ds_read_b64_tr_b16", aa[2:4], aA1, offset=PHI_IMG + 2048 * k + 1024)
        S.ds_read("ds_read_b64_tr_b16", bb[0:2], aB0, offset=1024 * k)
        S.ds_read("ds_read_b64_tr_b16", bb[2:4], aB1, offset=1024 * k + 512)
        S.mfma(D, aa, bb, 0 if k == 0 else D)
    S.op("s_lshl_b32", sT1, sM, 1)
    S.op("s_add_u32", sT1, sT1, sCh)
    S.op("s_lshl_b32", sT1, sT1, 13)
    S.op("s_and_b32", sT2, sTg, 1)
    S.op("s_lshl_b32", sT2, sT2, 12)
    S.op("s_add_u32", sT1, sT1, sT2)
    S.op("s_add_u32", sT1, sT1, WS_KV)
    for rho in range(16):
        S.buf_store("buffer_atomic_add_f32", D[rho], vL4, SWS, sT1, offset=256 * rho, tag="kvat")
    S.mark_vm("kvat")
    S.end_role(lab)


def kv_flag(G, S):
    lab = G.lab("kvf")
    S.op("s_lshr_b32", sT1, sTg, 1)
    S.op("s_cmp_lg_u32", sT1, sCh)
    S.begin_role("s_cbranch_scc1", lab, reads=SCC.regs())
    S.wait_vm_since("kvat")
    S.op("v_mov_b32", vT0, 1)
    S.op("v_mov_b32", vT1, 0)
    S.op("s_and_b32", sT2, sTg, 1)
    S.op("s_lshl_b32", sT1, sCh, 1)
    S.op("s_add_u32", sT1, sT1, sT2)
    S.op("s_lshl_b32", sT1, sT1, 2)
    S.op("s_add_u32", sT1, sT1, sStat)
    S.op("s_add_u32", sT1, sT1, 32)
    one_lane(S, lambda S: S.buf_store("buffer_store_dword", vT0, vT1, SWS, sT1, mods="sc1", tag="flag"))
    S.end_role(lab)


def phase1B_rest(G, p2slot, accQ):
    S = G.S
    P = POOL
    XR = XRAW
    acc2 = [v(XR, 16), v(XR + 16, 16)]
    ring = [v(XR + 32 + 4 * i, 4) for i in range(4)]
    kb = v(XR + 48, 8)
    p = v(P + 32, 16)
    sc = [v(P + 48), v(P + 49), v(P + 50), v(P + 51), v(P + 60), v(P + 61), v(P + 62), v(P + 63)]
    phi = v(P + 16, 16)
    tiles = [Tile(acc2[e], vF[e], [vStR[2 * e], vStR[2 * e + 1]], lambda c: p2slot[c], 0, 2048, 512) for e in range(2)]
    fill = groups_of(features(accQ, kb, p, sc, phi, vPhiA))
    if OPT.debug:
        D = Stream()
        dump(G, D, "phi", reglist(phi))
        fill.append(D.ins)
    per = -(-len(fill) // 4)
    p3slot = {0: p2slot[0], 1: p2slot[1], 2: p2slot[2], 3: p2slot[3], 4: p2slot[4], 5: p2slot[5], 6: STG[0]}
    st = new_pass_state(tiles, range(7))
    for i in range(7):
        slots = pass_slots(tiles, ring, [i], 0, 3, lambda c: c <= i + 1, st)
        f = fill[i * per:(i + 1) * per] if i < 4 else []
        dm = []
        if i == 0:
            dm += g_line(6, sLineB, p3slot[6], "b6")
        if i >= 1:
            dm += g_line(i - 1, sLineB, p3slot[i - 1], f"b{i - 1}") if i - 1 < 6 else []
        for g in dm:
            S.extend(g)
        S.extend(weave(slots, f))
        if i + 2 < 7:
            S.wait_vm_tag(f"a{i + 2}")
        if i == 6:
            S.wait_vm_tag("b0", "b1")
        S.barrier()
        cstamp(S, 28 + i)
    if OPT.debug:
        dump(G, S, "acc2", reglist(acc2[0]) + reglist(acc2[1]))
    stamp(S, 6)
    acc3 = [accQ, v(P + 32, 16)]
    tmp = v(XR + 48, 8)
    hb = [v(P + 52, 4), v(P + 56, 4)]
    tiles3 = [Tile(acc3[e], vF[e], [vStR[2 * e], vStR[2 * e + 1]], lambda c: p3slot[c], 0, 2048, 512) for e in range(2)]
    F = Stream()
    for e in range(2):
        F.extend(silu_tile(acc2[e], tmp, hb[e], h_store(sLineA, (2, e))))
    fill = groups_of(F)
    per = -(-len(fill) // 4)
    st = new_pass_state(tiles3, range(7))
    for i in range(7):
        slots = pass_slots(tiles3, ring, [i], 0, 3, lambda c: c <= i + 1, st)
        f = fill[i * per:(i + 1) * per] if i < 4 else []
        S.extend(weave(slots, f))
        if i == 5:
            S.wait_vm_tag("hst")
            stage_flag(S, 1)
        if i + 2 < 7:
            S.wait_vm_tag(f"b{i + 2}")
        S.barrier()
        cstamp(S, 35 + i)
    stamp(S, 7)
    for e in range(2):
        S.extend(silu_tile(acc3[e], tmp, hb[e], h_store(sLineB, (2, e))))
    off, pv = v(XR), v(XR + 1)
    S.op("v_lshrrev_b32", off, 1, vL)
    S.op("v_lshlrev_b32", off, 11, off)
    S.op("v_and_b32", pv, 1, vL)
    S.op("v_lshl_add_u32", off, pv, 2, off)
    S.op("s_lshl_b32", sT1, sM, 8)
    S.op("s_lshl_b32", sT2, sCh, 3)
    S.op("s_add_u32", sT1, sT1, sT2)
    S.op("s_add_u32", sPoll, sT1, WS_ST + 32)
    S.buf_load("buffer_load_dword", pv, off, SWS, sPoll, mods="sc1", tag="kvp")
    S.wait_vm_tag("hst")
    stage_flag(S, 2)
    poll_loop(G, S, off, SWS, sPoll, "v_cmp_eq_u32", 1, 0xFFFFFFFF, pv)
    stamp(S, 15)
    KVL = [RING + 49152, RING + 106496]
    S.op("s_lshl_b32", sT0, sM, 1)
    S.op("s_add_u32", sT0, sT0, sCh)
    S.op("s_lshl_b32", sT0, sT0, 13)
    S.op("s_lshl_b32", sT1, sTg, 11)
    S.op("s_add_u32", sT0, sT0, sT1)
    S.op("s_add_u32", sT0, sT0, WS_KV)
    S.op("s_mul_i32", sT2, sCh, KVL[1] - KVL[0])
    S.op("s_add_u32", sT2, sT2, sT1)
    for k in range(2):
        S.op("s_add_u32", M0, sT2, KVL[0])
        S.dma(vL16, SWS, sT0, offset=1024 * k, mods="sc1", tag="kvl")
    S.wait_vm_tag("kvl")
    S.barrier()
    kvr = v(XR, 32)
    S.op("s_mul_i32", sT2, sCh, KVL[1] - KVL[0])
    S.op("s_add_u32", sT2, sT2, KVL[0])
    S.op("v_add_u32", vT0, sT2, vL4)
    for q in range(16):
        S.ds_read2st64(kvr[2 * q:2 * q + 2], vT0, 2 * q, 2 * q + 1)
    kvb = v(XR + 32, 16)
    for q in range(16):
        S.op("v_cvt_pk_bf16_f32", kvb[q], kvr[2 * q], kvr[2 * q + 1])
    D = v(P, 16)
    for k in range(4):
        S.mfma(D, kvb[4 * k:4 * k + 4], phi[4 * k:4 * k + 4], 0 if k == 0 else D)
    den, t = vT0, vT1
    S.op("v_mov_b32", den, D[12])
    S.op("v_mov_b32", t, D[12])
    S.op("v_permlane32_swap_b32", den, t)
    S.op("v_add_f32", t, 1e-6, t)
    S.op("v_rcp_f32", t, t)
    for j in range(16):
        S.op("v_mul_f32", D[j], D[j], t)
    for j in range(12, 16):
        S.op("v_and_b32", D[j], vMask, D[j])
    ob = v(XR, 8)
    for q in range(8):
        S.op("v_cvt_pk_bf16_f32", ob[q], D[2 * q], D[2 * q + 1])
    S.op("s_lshl_b32", sT1, sR, 2)
    S.op("s_add_u32", sT1, sT1, sTg)
    S.op("s_lshl_b32", sT1, sT1, 4)
    S.op("s_lshl_b32", sT2, sM, 1)
    S.op("s_add_u32", sT1, sT1, sT2)
    S.op("s_add_u32", sT1, sT1, sCh)
    S.op("s_lshl_b32", sT1, sT1, 11)
    S.op("s_add_u32", sT1, sT1, WS_O)
    S.buf_store("buffer_store_dwordx4", ob[0:4], vL16, SWS, sT1, mods="sc1", tag="ost")
    S.buf_store("buffer_store_dwordx4", ob[4:8], vL16, SWS, sT1, offset=1024, mods="sc1", tag="ost")
    S.wait_vm_tag("ost")
    stage_flag(S, 3)


STAGE1 = [8, 9, 10, 11, 0, 1, 2, 3, 16, 17, 18, 19, 20, 21, 22, 23]
STAGE2 = [12, 13, 4, 5, 6, 7, 14, 15, 24, 25, 26, 27]
WO_L = 0
W2_L = 65536
NW2 = 12


def phase2(G):
    S = G.S
    S.wait_all()
    S.barrier()
    stamp(S, 8)
    S.op("s_cmp_eq_u32", sP2, 0)
    S.raw("s_cbranch_scc1 L_FIN", reads=SCC.regs())
    S.op("s_and_b32", sKq, sW, 3)
    S.op("s_lshr_b32", sU, sW, 2)
    vDw, vW = v(9), [v(10), v(11)]
    vXo, vRed = v(12), v(13)
    t0, t1, t2 = vT0, vT1, vT2
    S.op("v_lshrrev_b32", t0, 3, vL)
    S.op("v_bfe_u32", t1, t0, 1, 1)
    S.op("v_lshlrev_b32", t1, 2, t1)
    S.op("v_and_b32", t2, 7, vL)
    S.op("v_xor_b32", t1, t1, t2)
    S.op("s_lshl_b32", sT1, sU, 3)
    S.op("v_add_u32", t0, sT1, t0)
    S.op("v_mul_u32_u24", t0, 896, t0)
    S.op("v_lshl_add_u32", t0, t1, 4, t0)
    S.op("s_lshl_b32", sT1, sCb, 7)
    S.op("v_add_u32", vDw, sT1, t0)
    S.op("v_bfe_u32", t0, vL, 2, 2)
    S.op("v_lshrrev_b32", t1, 5, vL)
    S.op("v_lshl_add_u32", t1, t1, 2, t0)
    S.op("v_lshrrev_b32", t0, 1, t0)
    S.op("v_lshlrev_b32", t0, 6, t0)
    S.op("v_lshl_add_u32", t0, t1, 7, t0)
    S.op("v_bfe_u32", t1, vL, 4, 1)
    S.op("v_lshl_add_u32", t0, t1, 5, t0)
    S.op("v_and_b32", t1, 3, vL)
    S.op("v_lshl_add_u32", vW[0], t1, 3, t0)
    S.op("v_xor_b32", vW[1], 64, vW[0])
    vWo = [v(14), v(15)]
    S.op("s_lshl_b32", sT1, sKq, 14)
    for c in range(2):
        S.op("v_add_u32", vWo[c], sT1, vW[c])
    S.op("s_lshl_b32", sT1, sKq, 11)
    S.op("s_add_u32", sT1, sT1, W2_L)
    vWh = [v(6), v(7)]
    for c in range(2):
        S.op("v_add_u32", vW[c], sT1, vW[c])
        S.op("v_add_u32", vWh[c], 7 * 8192, vW[c])
    S.op("s_lshr_b32", sT1, sTb, 1)
    S.op("s_lshl_b32", sT1, sT1, 2)
    S.op("s_and_b32", sT2, sTb, 1)
    S.op("s_lshl_b32", sT2, sT2, 1)
    S.op("s_add_u32", sT1, sT1, sT2)
    S.op("s_add_u32", sT1, sT1, sU)
    S.op("s_mul_i32", sHld, sT1, 112 * 1024)
    S.op("s_mul_i32", sT2, sKq, 28 * 1024)
    S.op("s_add_u32", sHld, sHld, sT2)
    S.op("s_lshl_b32", sOld, sT1, 15)
    S.op("s_lshl_b32", sT2, sKq, 13)
    S.op("s_add_u32", sOld, sOld, sT2)
    S.op("s_add_u32", sOld, sOld, WS_O)
    S.op("s_mul_i32", sW2o, sKq, 448 * 896)
    S.op("s_lshl_b32", s(22), sKq, 14)
    S.op("s_lshl_b32", sT1, sU, 10)
    S.op("s_add_u32", s(22), s(22), sT1)
    S.op("s_lshl_b32", s(23), sKq, 11)
    S.op("s_add_u32", s(23), s(23), sT1)
    order = STAGE1 + STAGE2

    def w2_group(n):
        lam = order[n]
        return dma_group(vDw, SW2, [lambda S: S.op("s_add_u32", sT0, sW2o, lam * 16 * 896)], sT0,
                         W2_L + 8192 * (n % NW2), f"W{n}", wave_term=s(23))

    for n in range(NW2):
        S.extend(w2_group(n))
    S.op("s_mul_i32", s(24), sKq, 112 * 896)
    for pz in range(8):
        S.extend(dma_group(vDw, SWO, [lambda S: S.op("s_add_u32", sT0, s(24), pz * 16 * 896)], sT0,
                           WO_L + 2048 * pz, "wo", wave_term=s(22)))
    xr = v(24, 4)
    S.op("v_and_b32", t0, 31, vL)
    S.op("s_lshl_b32", sT1, sTb, 6)
    S.op("s_lshl_b32", sT2, sU, 5)
    S.op("s_add_u32", sT1, sT1, sT2)
    S.op("v_add_u32", t0, sT1, t0)
    S.op("v_mul_u32_u24", t0, 896, t0)
    S.op("s_lshl_b32", sT1, sCb, 7)
    S.op("s_lshl_b32", sT2, sKq, 5)
    S.op("s_add_u32", sT1, sT1, sT2)
    S.op("v_add_u32", t0, sT1, t0)
    S.op("v_lshrrev_b32", t1, 5, vL)
    S.op("v_lshl_add_u32", vXo, t1, 3, t0)
    S.op("v_lshl_add_u32", v(3), t1, 4, t0)
    S.buf_load("buffer_load_dwordx2", xr[0:2], vXo, SX, 0, tag="xr")
    S.buf_load("buffer_load_dwordx2", xr[2:4], vXo, SX, 0, offset=16, tag="xr")
    off, pv = v(4), v(5)
    S.op("v_bfe_u32", t0, vL, 2, 1)
    S.op("v_lshlrev_b32", t0, 8, t0)
    S.op("v_bfe_u32", t1, vL, 1, 1)
    S.op("v_lshl_add_u32", t0, t1, 7, t0)
    S.op("v_and_b32", t1, 1, vL)
    S.op("v_lshl_add_u32", off, t1, 4, t0)
    S.op("s_lshr_b32", sT1, sTb, 1)
    S.op("s_lshl_b32", sT1, sT1, 11)
    S.op("s_lshl_b32", sT2, sKq, 9)
    S.op("s_add_u32", sT1, sT1, sT2)
    S.op("s_and_b32", sT2, sTb, 1)
    S.op("s_lshl_b32", sT2, sT2, 1)
    S.op("s_add_u32", sT2, sT2, sU)
    S.op("s_lshl_b32", sT2, sT2, 2)
    S.op("s_add_u32", sT1, sT1, sT2)
    S.op("s_add_u32", sPoll, sT1, WS_ST)

    def poll(stage, mask):
        S.buf_load("buffer_load_dword", pv, off, SWS, sPoll, mods="sc1", tag="fp")
        poll_loop(G, S, off, SWS, sPoll, "v_cmp_le_u32", stage, mask, pv)

    def hload(n):
        S.op("s_add_u32", sT0, sHld, order[n] * 1024)
        S.buf_load("buffer_load_dwordx4", a(4 * n, 4), vL16, SWS, sT0, mods="sc1", tag=f"h{n}")

    accO = [v(32, 16), v(48, 16)]
    accS = [v(64, 16), v(80, 16)]
    ring = [v(96 + 4 * i, 4) for i in range(8)]
    poll(1, 0xFF)
    stamp(S, 9)
    for n in range(16):
        hload(n)
    S.wait_vm_tag(*[f"W{n}" for n in range(NW2)], "wo")
    S.barrier()
    stamp(S, 10)
    cstamp(S, 42)
    rp = 0

    def areads(n, c):
        nonlocal rp
        dst = ring[rp % 8]
        rp += 1
        sl = n % NW2
        ad = vW[c] if sl < 7 else vWh[c]
        off_ = 8192 * (sl if sl < 7 else sl - 7)
        S.ds_read("ds_read_b64_tr_b16", dst[0:2], ad, offset=off_)
        S.ds_read("ds_read_b64_tr_b16", dst[2:4], ad, offset=off_ + 1024)
        return dst

    for q in range(7):
        if q == 3:
            poll(2, 0xFF)
            for n in range(16, 28):
                hload(n)
        if q >= 1:
            for n in range(4 * (q - 1) + NW2, min(4 * q + NW2, 28)):
                S.extend(w2_group(n))
        fr = {}
        for n in range(4 * q, 4 * q + 4):
            for c in range(2):
                fr[(n, c)] = areads(n, c)
        for n in range(4 * q, 4 * q + 4):
            for c in range(2):
                S.mfma(accO[c], fr[(n, c)], a(4 * n, 4), 0 if n == 0 else accO[c])
        nxt = [f"W{n}" for n in range(4 * (q + 1), min(4 * (q + 2), 28)) if n >= NW2]
        if nxt:
            S.wait_vm_tag(*nxt)
        S.barrier()
        cstamp(S, 43 + q)
    stamp(S, 11)
    RED_O, RED_S = W2_L, 0
    vRedO = v(8)
    S.op("s_mul_i32", sT1, sU, 4 * 4 * 2048)
    S.op("s_lshl_b32", sT2, sKq, 11)
    S.op("s_add_u32", sT1, sT1, sT2)
    S.op("v_add_u32", vRed, sT1, vL16)
    S.op("v_add_u32", vRedO, RED_O, vRed)

    def red_put(acc, base):
        ad = vRedO if base == RED_O else vRed
        for pi in range(4):
            c, e = pi >> 1, pi & 1
            for hh in range(2):
                S.ds_write("ds_write_b128", ad, acc[c][8 * e + 4 * hh:8 * e + 4 * hh + 4],
                           offset=pi * 8192 + hh * 1024, tag="red")

    red_put(accO, RED_O)
    poll(3, 0xCC)
    stamp(S, 12)
    for n in range(8):
        S.op("s_add_u32", sT0, sOld, n * 1024)
        S.buf_load("buffer_load_dwordx4", a(4 * n, 4), vL16, SWS, sT0, mods="sc1", tag=f"o{n}")
    for n in range(8):
        hh, k = n >> 1, n & 1
        row0 = 28 * hh + 16 * k
        fr = []
        for c in range(2):
            dst = ring[(2 * n + c) % 8]
            S.ds_read("ds_read_b64_tr_b16", dst[0:2], vWo[c], offset=WO_L + row0 * 128)
            S.ds_read("ds_read_b64_tr_b16", dst[2:4], vWo[c], offset=WO_L + row0 * 128 + 1024)
            fr.append(dst)
        for c in range(2):
            S.mfma(accS[c], fr[c], a(4 * n, 4), 0 if n == 0 else accS[c])
    S.wait_lgkm_tag("red")
    S.barrier()
    stamp(S, 13)
    red_put(accS, RED_S)
    vRd = v(14)
    S.op("s_mul_i32", sT1, sU, 4 * 4 * 2048)
    S.op("s_lshl_b32", sT2, sKq, 13)
    S.op("s_add_u32", sT1, sT1, sT2)
    S.op("v_add_u32", vRd, sT1, vL16)
    vRdO = v(15)
    S.op("v_add_u32", vRdO, RED_O, vRd)
    o_parts = [v(96 + 8 * k, 8) for k in range(4)]
    for src in range(4):
        for hh in range(2):
            S.ds_read("ds_read_b128", o_parts[src][4 * hh:4 * hh + 4], vRdO, offset=src * 2048 + hh * 1024)
    og = v(32, 8)
    for j in range(8):
        S.op("v_add_f32", og[j], o_parts[0][j], o_parts[1][j])
    for j in range(8):
        S.op("v_add_f32", o_parts[2][j], o_parts[2][j], o_parts[3][j])
    for j in range(8):
        S.op("v_add_f32", og[j], og[j], o_parts[2][j])
    tmp = v(40, 8)
    for j in range(8):
        S.op("v_mul_f32", tmp[j], sNL, og[j])
    for j in range(8):
        S.op("v_exp_f32", tmp[j], tmp[j])
    for j in range(8):
        S.op("v_add_f32", tmp[j], 1.0, tmp[j])
    for j in range(8):
        S.op("v_rcp_f32", tmp[j], tmp[j])
    for j in range(8):
        S.op("v_mul_f32", og[j], og[j], tmp[j])
    xf = v(48, 8)
    for q in range(4):
        S.op("v_lshlrev_b32", xf[2 * q], 16, xr[q])
        S.op("v_and_b32", xf[2 * q + 1], sHi, xr[q])
    S.wait_lgkm_tag("red")
    S.barrier()
    for src in range(4):
        for hh in range(2):
            S.ds_read("ds_read_b128", o_parts[src][4 * hh:4 * hh + 4], vRd, offset=src * 2048 + hh * 1024)
    sv = v(56, 8)
    for j in range(8):
        S.op("v_add_f32", sv[j], o_parts[0][j], o_parts[1][j])
    for j in range(8):
        S.op("v_add_f32", o_parts[2][j], o_parts[2][j], o_parts[3][j])
    for j in range(8):
        S.op("v_add_f32", sv[j], sv[j], o_parts[2][j])
    if OPT.debug:
        dump(G, S, "sv", reglist(sv) + reglist(og))
    for j in range(8):
        S.op("v_fma_f32", sv[j], sv[j], og[j], xf[j])
    yb = v(64, 4)
    for q in range(4):
        S.op("v_cvt_pk_bf16_f32", yb[q], sv[2 * q], sv[2 * q + 1])
    S.op("v_permlane32_swap_b32", yb[0], yb[2])
    S.op("v_permlane32_swap_b32", yb[1], yb[3])
    S.buf_store("buffer_store_dwordx4", yb, v(3), SOUT, 0, tag="out")
    S.label("L_FIN")
    if OPT.stamps:
        S.wait_all()
        stamp(S, 14)
        stamp_flush(S)


def build():
    G = Gen()
    S = G.S
    prologue(G)
    S.op("s_cmp_eq_u32", sTy, 0)
    S.raw("s_cbranch_scc0 L_TYPEB", reads=SCC.regs())
    S.align8()
    lines_all = []
    l0, st0 = finalize(S, align8=OPT.align8)
    out = {}
    for ty in (0, 1):
        G2 = Gen()
        G2.nlabel = 1000 * (ty + 1)
        G2.dumps = list(G.dumps)
        prologue(G2)
        G2.S.op("s_cmp_eq_u32", sTy, 0)
        G2.S.raw("s_cbranch_scc0 L_TYPEB", reads=SCC.regs())
        G2.S.align8()
        G2.S.label("L_SPLIT")
        phase1(G2, ty == 0)
        if OPT.stop_after is None:
            G2.S.wait_all()
        l, st = finalize(G2.S, align8=OPT.align8)
        k = l.index("L_SPLIT:")
        out[ty] = (l[k + 1:], st, G2.dumps)
    G3 = Gen()
    G3.nlabel = 5000
    G3.dumps = list(out[0][2])
    if OPT.stop_after is None:
        phase2(G3)
    l3, st3 = finalize(G3.S, align8=OPT.align8)
    body = l0 + out[0][0] + ["    s_branch L_PH2", ".p2align 3", "L_TYPEB:"] + out[1][0] + \
        [".p2align 3", "L_PH2:"] + l3 + ["L_END:", "    s_endpgm"]
    info = {"prologue": st0, "A": out[0][1], "B": out[1][1], "p2": st3,
            "dumpsA": out[0][2], "dumpsB": out[1][2], "dumps2": G3.dumps}
    return body, info


HEADER = """; Kernarg layout for this problem (88 bytes, ptrs only, base s[0:1]):
; @launch grid=(256,1,1) block=(512,1,1) lds=163840
"""


def full_text(body):
    k = KNAME + "_kernel"
    t = HEADER
    t += '.amdgcn_target "amdgcn-amd-amdhsa--gfx950"\n.text\n'
    t += f".globl {k}\n.p2align 8\n.type {k},@function\n{k}:\n"
    t += "\n".join(body) + "\n"
    t += f""".section .rodata,"a"
.p2align 6
.amdhsa_kernel {k}
  .amdhsa_next_free_vgpr 256
  .amdhsa_next_free_sgpr 102
  .amdhsa_accum_offset 144
  .amdhsa_group_segment_fixed_size 0
  .amdhsa_kernarg_size 88
  .amdhsa_user_sgpr_count 2
  .amdhsa_user_sgpr_kernarg_segment_ptr 1
  .amdhsa_system_sgpr_workgroup_id_x 1
  .amdhsa_float_denorm_mode_32 3
  .amdhsa_float_denorm_mode_16_64 3
.end_amdhsa_kernel
"""
    return t


if __name__ == "__main__":
    import argparse, json
    ap = argparse.ArgumentParser()
    ap.add_argument("-o", default="out.s")
    ap.add_argument("--debug", action="store_true")
    ap.add_argument("--stop", default=None)
    ap.add_argument("--noalign", action="store_true")
    ap.add_argument("--stamps", action="store_true")
    ap.add_argument("--lnfast", action="store_true")
    ap.add_argument("--nopround", action="store_true")
    args = ap.parse_args()
    OPT.debug = args.debug
    OPT.stop_after = args.stop
    OPT.align8 = not args.noalign
    OPT.stamps = args.stamps
    OPT.lnfast = args.lnfast
    OPT.nopround = args.nopround
    body, info = build()
    open(args.o, "w").write(full_text(body))
    json.dump({k: info[k] for k in ("dumpsA", "dumpsB", "dumps2")}, open(args.o + ".json", "w"))
    for k in ("prologue", "A", "B", "p2"):
        print(k, info[k])
```

```python
import sys, os, struct
from asmgen import *

KNAME = "recurrent_scan__linear_kernel_hedgehog__glu_gated_swiglu__prompt"

class Opt:
    debug = False
    stop_after = None
    align8 = True
    stamps = False
    lnfast = False
    nopround = False
    perturb = 0.0
OPT = Opt()

WS_H = 0
WS_O = 0x700000
WS_KV = 0x900000
WS_ST = 0x920000
WS_DUMP = 0x1000000
WS_SIZE = 268435456

sWG = s(2)
SX, SQKV, SW1, SW3 = s(28, 4), s(32, 4), s(36, 4), s(40, 4)
SW2, SWO, SPHI, SOUT = s(44, 4), s(48, 4), s(52, 4), s(56, 4)
SWS, SDBG = s(60, 4), s(64, 4)
SWH = s(4, 4)
sW, sTg, sCh, sR, sM, sTy = s(68), s(69), s(70), s(71), s(72), s(73)
sCk = [s(74 + i) for i in range(7)]
sSelLo, sSelHi, sOnes, sHi, sL, sNL = s(81), s(82), s(83), s(84), s(85), s(86)
sWK = s(87)
sLineA, sLineB = s(88), s(89)
sHst = s(90)
sStat = s(91)
sT0, sT1, sT2, sT3 = s(92), s(93), s(94), s(95)
sP2 = s(96)
sTb, sCb = s(97), s(98)
sRole = s(99)
sSpin = s(100)
sIdx = s(101)
sKq, sU, sHld, sW2o, sOld, sPoll = s(8), s(9), s(10), s(11), s(12), s(13)
sE0, sE1 = s(14, 2), s(16, 2)
sDmp = s(18)
sStamp = s(20, 2)

STG = [0, 16384]
AUX = 32768
RING = 49152
PHI_IMG = 0
V_IMG = 32768
LDS_BYTES = 163840

vL = v(1)
vL16 = v(2)
vStW = v(3)
vStR = [v(4), v(5), v(6), v(7)]
vQ = v(8)
vDq = v(9)
vD1, vD3 = v(10), v(11)
vF = [v(12), v(13)]
vDh, vFh = v(14), v(15)
vMask, vOne, vM01 = v(16), v(17), v(18)
vL4 = v(19)
vT0, vT1, vT2, vT3 = v(20), v(21), v(22), v(23)
XRAW = 24
POOL = 80

LOG2E = 1.4426950408889634


def X(sig, i):
    return v(XRAW + 28 * sig + 4 * i, 4)


def xn(step):
    return a(4 * step, 4)


class Gen:
    def __init__(self):
        self.S = Stream()
        self.nlabel = 0
        self.dumps = []

    def lab(self, base):
        self.nlabel += 1
        return f"L_{base}_{self.nlabel}"


def groups_of(stream):
    return [[i] for i in stream.ins]


def weave(slots, fillers, first=0):
    out = []
    n = len(slots)
    tot = sum(len(g) for g in fillers)
    fi = 0
    done = 0
    for k, sl in enumerate(slots):
        out.extend(sl)
        if k < first:
            continue
        goal = tot * (k + 1 - first) / max(n - first, 1)
        while fi < len(fillers) and done < goal - 1e-9:
            out.extend(fillers[fi])
            done += len(fillers[fi])
            fi += 1
    while fi < len(fillers):
        out.extend(fillers[fi])
        fi += 1
    return out


def dma_group(voff, srd, soff_ins, soff, lds_addr_const, tag, wave_term=sWK, mods=""):
    S = Stream()
    for fn in soff_ins:
        fn(S)
    if wave_term is None:
        S.op("s_mov_b32", M0, lds_addr_const)
    else:
        S.op("s_add_u32", M0, wave_term, lds_addr_const)
    S.dma(voff, srd, soff, tag=tag, mods=mods)
    return S.ins


def dump(G, S, name, regs, role=None):
    if not OPT.debug:
        return
    base = WS_DUMP + sum(d[1] * 256 * 8 * 256 for d in G.dumps)
    n = len(regs)
    G.dumps.append((name, n, base))
    S.op("s_lshl_b32", sDmp, sWG, 3)
    S.op("s_add_u32", sDmp, sDmp, sW)
    S.op("s_mul_i32", sDmp, sDmp, n * 256)
    S.op("s_add_u32", sDmp, sDmp, base)
    for k, r in enumerate(regs):
        S.buf_store("buffer_store_dword", r, vL4, SWS, sDmp, tag="dump")
        S.op("s_add_u32", sDmp, sDmp, 256)
    S.wait_vm_tag("dump")


WS_STAMP = 0x0A00000


def stamp(S, k):
    if not OPT.stamps:
        return
    S.raw("s_memrealtime s[20:21]", size=8, kind="smem")
    S.raw("s_waitcnt lgkmcnt(0)", kind="wait")
    S.fence(vm=False, lgkm=True)
    S.raw(f"v_writelane_b32 v0, s20, {k}", size=8, kind="valu", writes=[("v", 0)])


def cstamp(S, k):
    if not OPT.stamps:
        return
    S.raw("s_memtime s[20:21]", size=8, kind="smem")
    S.raw("s_waitcnt lgkmcnt(0)", kind="wait")
    S.fence(vm=False, lgkm=True)
    S.raw(f"v_writelane_b32 v0, s20, {k}", size=8, kind="valu", writes=[("v", 0)])


def stamp_flush(S):
    if not OPT.stamps:
        return
    S.op("s_lshl_b32", sT1, sWG, 3)
    S.op("s_add_u32", sT1, sT1, sW)
    S.op("s_lshl_b32", sT1, sT1, 8)
    S.op("s_add_u32", sT1, sT1, WS_STAMP)
    S.nop(2)
    S.buf_store("buffer_store_dword", v(0), vL4, SWS, sT1, tag="stamp")
    S.wait_vm_tag("stamp")


def reglist(r):
    return [r[i] for i in range(r.n)]


def prologue(G):
    S = G.S
    S.op("s_cmp_ge_u32", sWG, 256)
    S.raw("s_cbranch_scc1 L_END", reads=SCC.regs())
    if OPT.stamps:
        S.raw("s_memrealtime s[26:27]", size=8, kind="smem")
    S.raw("s_load_dwordx16 s[4:19], s[0:1], 0", size=8, kind="smem")
    S.raw("s_load_dwordx4 s[20:23], s[0:1], 64", size=8, kind="smem")
    S.raw("s_load_dwordx2 s[24:25], s[0:1], 80", size=8, kind="smem")
    S.op("v_and_b32", vL, 63, v(0))
    S.op("v_lshrrev_b32", vT0, 6, v(0))
    S.op("v_lshlrev_b32", vL16, 4, vL)
    S.op("v_readfirstlane_b32", sW, vT0)
    S.op("v_lshlrev_b32", vL4, 2, vL)
    S.op("s_and_b32", sT0, sWG, 7)
    S.op("s_lshr_b32", sIdx, sWG, 3)
    S.op("s_lshr_b32", sT1, sT0, 2)
    S.op("s_lshl_b32", sT1, sT1, 3)
    S.op("s_lshr_b32", sT2, sIdx, 2)
    S.op("s_add_u32", sR, sT1, sT2)
    S.op("s_and_b32", sT1, sT0, 3)
    S.op("s_lshl_b32", sT1, sT1, 1)
    S.op("s_bfe_u32", sT3, sIdx, 0x10001)
    S.op("s_add_u32", sM, sT1, sT3)
    S.op("s_and_b32", sTy, sIdx, 1)
    S.op("s_and_b32", sTg, sW, 3)
    S.op("s_lshr_b32", sCh, sW, 2)
    S.op("s_lshl_b32", sWK, sW, 10)
    S.op("s_cmp_eq_u32", sT2, 7)
    S.op("s_cselect_b32", sT2, 0, sT2)
    for i in range(7):
        S.op("s_add_u32", sCk[i], sT2, i)
        S.op("s_cmp_ge_u32", sCk[i], 7)
        S.op("s_cselect_b32", sT1, 7, 0)
        S.op("s_sub_u32", sCk[i], sCk[i], sT1)
    S.op("s_mul_i32", sT1, sIdx, 37)
    S.op("s_lshr_b32", sT1, sT1, 8)
    S.op("s_mul_i32", sT2, sT1, 7)
    S.op("s_sub_u32", sCb, sIdx, sT2)
    S.op("s_lshl_b32", sT2, sT0, 2)
    S.op("s_add_u32", sTb, sT2, sT1)
    S.op("s_cmp_lt_u32", sIdx, 28)
    S.op("s_cselect_b32", sP2, 1, 0)
    S.op("s_lshl_b32", sT1, sR, 7)
    S.op("s_lshl_b32", sT2, sW, 4)
    S.op("s_add_u32", sT1, sT1, sT2)
    S.op("v_lshrrev_b32", vT0, 3, vL)
    S.op("v_add_u32", vT1, sT1, vT0)
    S.op("v_mul_u32_u24", vT1, 896, vT1)
    S.op("v_and_b32", vT2, 7, vL)
    S.op("v_lshl_add_u32", vT1, vT2, 4, vT1)
    S.op("v_add_u32", vT3, 7168, vT1)
    S.raw("s_waitcnt lgkmcnt(0)", kind="wait")
    if OPT.stamps:
        S.raw("v_writelane_b32 v0, s26, 0", size=8, kind="valu", writes=[("v", 0)])
    srd(S, SX, s(4, 2), 2048 * 896)
    for i in range(7):
        S.op("s_lshl_b32", s(26), sCk[i], 7)
        S.buf_load("buffer_load_dwordx4", X(0, i), vT1, SX, s(26), tag="x")
        S.buf_load("buffer_load_dwordx4", X(1, i), vT3, SX, s(26), tag="x")
    srd(S, SQKV, s(6, 2), 448 * 2688)
    srd(S, SPHI, s(8, 2), 16 * 1568)
    srd(S, SWO, s(10, 2), 448 * 896)
    srd(S, SW1, s(14, 2), 448 * 3584)
    srd(S, SW3, s(16, 2), 448 * 3584)
    srd(S, SW2, s(18, 2), 1792 * 896)
    srd(S, SOUT, s(20, 2), 2048 * 896)
    srd(S, SDBG, s(22, 2), 256)
    srd(S, SWS, s(24, 2), WS_SIZE)
    S.op("s_cmp_eq_u32", sP2, 0)
    S.op("s_cselect_b32", SW2[2], 0, SW2[2])
    S.op("s_cselect_b32", SWO[2], 0, SWO[2])
    S.op("s_mov_b32", sSelLo, 0x00003F80)
    S.op("s_mov_b32", sSelHi, 0x3F800000)
    S.op("s_mov_b32", sOnes, 0x3F803F80)
    S.op("s_mov_b32", sHi, 0xFFFF0000)
    S.op("s_mov_b32", sL, LOG2E)
    S.op("s_mov_b32", sNL, -LOG2E)
    S.op("s_lshl_b32", sT1, sR, 3)
    S.op("s_add_u32", sT1, sT1, sM)
    S.op("s_lshl_b32", sT1, sT1, 1)
    S.op("s_add_u32", sT1, sT1, sTy)
    S.op("s_lshl_b32", sT1, sT1, 7)
    S.op("s_add_u32", sStat, sT1, WS_ST)
    S.op("s_lshl_b32", sT1, sR, 2)
    S.op("s_add_u32", sT1, sT1, sTg)
    S.op("s_mul_i32", sHst, sT1, 112 * 1024)
    S.op("s_mul_i32", sT1, sM, 448)
    S.op("s_and_b32", sT2, sM, 1)
    S.op("s_lshl_b32", sT3, sTy, 1)
    S.op("s_add_u32", sT2, sT2, sT3)
    tabA = [256, 64, 0, 192]
    tabB = [384, 0, 128, 320]
    for dst, tab in ((sLineA, tabA), (sLineB, tabB)):
        S.op("s_mov_b32", dst, tab[0])
        for k in (1, 2, 3):
            S.op("s_cmp_eq_u32", sT2, k)
            S.op("s_cselect_b32", dst, tab[k], dst)
        S.op("s_add_u32", dst, dst, sT1)
    lane_patterns(S)
    stamp(S, 1)


def srd(S, d, ptr, nbytes):
    S.op("s_mov_b32", d[0], ptr[0])
    S.op("s_mov_b32", d[1], ptr[1])
    S.op("s_mov_b32", d[2], nbytes)
    S.op("s_mov_b32", d[3], 0x20000)


def lane_patterns(S):
    t0, t1, t2, t3 = vT0, vT1, vT2, vT3
    p0, p1, p2, p3, p4, p5 = [v(POOL + i) for i in range(6)]
    row, pos, hf, rr, cc, g0 = p0, p1, p2, p3, p4, p5
    S.op("v_lshrrev_b32", row, 3, vL)
    S.op("v_and_b32", pos, 7, vL)
    S.op("v_lshrrev_b32", hf, 5, vL)
    S.op("v_bfe_u32", rr, vL, 2, 2)
    S.op("v_and_b32", cc, 3, vL)
    S.op("v_bfe_u32", g0, vL, 4, 1)
    S.op("s_lshr_b32", sT1, sW, 1)
    S.op("s_lshl_b32", sT1, sT1, 12)
    S.op("s_and_b32", sT2, sW, 1)
    S.op("s_lshl_b32", sT2, sT2, 8)
    S.op("s_add_u32", sT1, sT1, sT2)
    S.op("v_xor_b32", t0, row, pos)
    S.op("v_lshlrev_b32", t0, 4, t0)
    S.op("v_and_b32", t1, 1, pos)
    S.op("v_lshl_add_u32", t0, t1, 9, t0)
    S.op("v_lshrrev_b32", t1, 1, pos)
    S.op("v_lshl_add_u32", t0, t1, 10, t0)
    S.op("v_add_u32", vStW, sT1, t0)
    S.op("s_lshl_b32", sT1, sTg, 12)
    for k in range(4):
        S.op("v_add_u32", t0, 2 * k, hf)
        S.op("v_xor_b32", t0, t0, vL)
        S.op("v_lshlrev_b32", t0, 4, t0)
        S.op("v_add_u32", t0, sT1, t0)
        S.op("v_add_u32", vStR[k], 1024 * k, t0)
    r16, sw = v(POOL + 6), v(POOL + 7)
    S.op("v_lshl_add_u32", r16, hf, 3, rr)
    S.op("v_lshrrev_b32", sw, 1, rr)
    S.op("v_xor_b32", t0, sCh, sw)
    S.op("v_lshlrev_b32", t0, 6, t0)
    S.op("v_lshl_add_u32", t0, r16, 7, t0)
    S.op("v_lshl_add_u32", t0, g0, 5, t0)
    S.op("v_lshl_add_u32", vQ, cc, 3, t0)
    S.op("v_lshl_or_b32", t1, g0, 1, sw)
    S.op("s_lshl_b32", sT1, sCh, 1)
    for e in range(2):
        S.op("s_add_u32", sT2, sT1, e)
        S.op("v_xor_b32", t0, sT2, t1)
        S.op("v_lshlrev_b32", t0, 5, t0)
        S.op("v_lshl_add_u32", t0, r16, 7, t0)
        S.op("v_lshl_add_u32", t0, g0, 13, t0)
        S.op("v_lshl_add_u32", vF[e], cc, 3, t0)
    S.op("v_xor_b32", t0, sCh, g0)
    S.op("v_lshlrev_b32", t0, 5, t0)
    S.op("v_lshl_add_u32", t0, r16, 6, t0)
    S.op("v_lshl_add_u32", t0, g0, 12, t0)
    S.op("v_lshl_add_u32", vFh, cc, 3, t0)
    rsw = v(POOL + 8)
    S.op("v_bfe_u32", rsw, row, 1, 1)
    S.op("s_lshl_b32", sT1, sW, 3)
    S.op("v_add_u32", t0, sT1, row)
    S.op("v_mul_u32_u24", t2, 2688, t0)
    S.op("v_bfe_u32", t1, vL, 2, 1)
    S.op("v_xor_b32", t1, t1, rsw)
    S.op("v_mul_u32_u24", t1, 56, t1)
    S.op("v_add_u32", t2, t2, t1)
    S.op("v_lshl_add_u32", t2, cc, 4, t2)
    S.op("s_mul_i32", sT2, sM, 112)
    S.op("v_add_u32", vDq, sT2, t2)
    S.op("v_mul_u32_u24", t2, 3584, t0)
    S.op("v_lshlrev_b32", t1, 1, rsw)
    S.op("v_xor_b32", t1, t1, pos)
    S.op("v_lshl_add_u32", vD1, t1, 4, t2)
    S.op("v_xor_b32", vD3, 64, vD1)
    S.op("s_lshl_b32", sT1, sTg, 4)
    S.op("v_lshrrev_b32", t0, 2, vL)
    S.op("v_add_u32", t0, sT1, t0)
    S.op("v_mul_u32_u24", t0, 3584, t0)
    S.op("s_lshl_b32", sT1, sCh, 1)
    S.op("v_xor_b32", t1, sT1, cc)
    S.op("v_lshl_add_u32", vDh, t1, 4, t0)
    S.op("v_sub_u32", t0, hf, 1)
    S.op("v_mov_b32", vMask, t0)
    S.op("v_and_b32", vM01, 1.0, vMask)
    S.op("v_xor_b32", vOne, 1.0, vM01)
    S.op("v_lshl_or_b32", t0, g0, 2, cc)
    S.op("v_min_u32", t0, 6, t0)
    S.op("v_lshlrev_b32", t0, 3, t0)
    S.op("v_lshl_add_u32", t1, hf, 2, rr)
    S.op("v_mul_u32_u24", t1, 56, t1)
    S.op("v_add_u32", t0, t0, t1)
    S.op("s_mul_i32", sT1, sCh, 1568)
    S.op("s_add_u32", sT1, sT1, AUX)
    S.op("v_add_u32", vPhiAddr, sT1, t0)


vPhiAddr = v(POOL + 63)
vPhiA = v(POOL + 52, 8)


def g_qkv(i, matoff, lds, tag):
    return dma_group(vDq, SQKV,
                     [lambda S: S.op("s_mul_i32", sT0, sCk[i], 64 * 2688)] +
                     ([lambda S: S.op("s_add_u32", sT0, sT0, matoff)] if matoff else []),
                     sT0, lds, tag)


def g_line(i, sLine, lds, tag):
    g1 = dma_group(vD1, SW1, [lambda S: S.op("s_mul_i32", sT0, sCk[i], 64 * 3584),
                              lambda S: S.op("s_add_u32", sT0, sT0, sLine)], sT0, lds, tag)
    g3 = dma_group(vD3, SW3, [lambda S: S.op("s_mul_i32", sT0, sCk[i], 64 * 3584),
                              lambda S: S.op("s_add_u32", sT0, sT0, sLine)], sT0, lds + 8192, tag)
    return [g1, g3]


def g_half(i, sLine, lds, tag):
    return dma_group(vDh, SWH, [lambda S: S.op("s_mul_i32", sT0, sCk[i], 64 * 3584),
                                lambda S: S.op("s_add_u32", sT0, sT0, sLine)], sT0, lds, tag)


vSum = [v(POOL + 48), v(POOL + 49)]
vSq = [v(POOL + 50), v(POOL + 51)]
vNegm = vSum
vRstd = vSq
LNT = [v(POOL + 40 + i) for i in range(8)]


def ln_stats(S):
    for sg in range(2):
        S.op("v_mov_b32", vSum[sg], 0)
        S.op("v_mov_b32", vSq[sg], 0)
    for i in range(7):
        for q in range(4):
            for sg in range(2):
                S.op("v_dot2c_f32_bf16", vSum[sg], sOnes, X(sg, i)[q])
                S.op("v_dot2c_f32_bf16", vSq[sg], X(sg, i)[q], X(sg, i)[q])
    for mods in ("quad_perm:[1,0,3,2] row_mask:0xf bank_mask:0xf", "quad_perm:[2,3,0,1] row_mask:0xf bank_mask:0xf",
                 "row_half_mirror row_mask:0xf bank_mask:0xf"):
        for r in (vSum[0], vSq[0], vSum[1], vSq[1]):
            S.op("v_add_f32_dpp", r, r, r, mods=mods)
    t = LNT
    for sg in range(2):
        S.op("v_mul_f32", vSum[sg], -1.0 / 448, vSum[sg])
        S.op("v_mul_f32", vSq[sg], 1.0 / 448, vSq[sg])
    for sg in range(2):
        S.op("v_fma_f32", vSq[sg], Neg(vSum[sg]), vSum[sg], vSq[sg])
        S.op("v_cvt_pk_bf16_f32", t[sg], vSum[sg], vSum[sg])
    for sg in range(2):
        S.op("v_max_f32", vSq[sg], 0, vSq[sg])
        S.op("v_and_b32", vNegm[sg], sHi, t[sg])
    for sg in range(2):
        S.op("v_cvt_pk_bf16_f32", t[sg], vSq[sg], vSq[sg])
    for sg in range(2):
        S.op("v_and_b32", t[sg], sHi, t[sg])
    for sg in range(2):
        S.op("v_add_f32", t[sg], 1e-5, t[sg])
    for sg in range(2):
        S.op("v_cvt_pk_bf16_f32", t[sg], t[sg], t[sg])
    for sg in range(2):
        S.op("v_and_b32", t[sg], sHi, t[sg])
    for sg in range(2):
        S.op("v_sqrt_f32", t[sg], t[sg])
    for sg in range(2):
        S.op("v_cvt_pk_bf16_f32", t[sg], t[sg], t[sg])
    for sg in range(2):
        S.op("v_and_b32", t[sg], sHi, t[sg])
    for sg in range(2):
        S.op("v_rcp_f32", vRstd[sg], t[sg])
    if OPT.lnfast:
        for sg in range(2):
            S.op("v_mul_f32", vNegm[sg], vNegm[sg], vRstd[sg])


def ln_norm(i):
    S = Stream()
    t = LNT
    for sg in range(2):
        P = X(sg, i)
        if OPT.lnfast:
            for q in range(4):
                S.op("v_lshlrev_b32", t[2 * q], 16, P[q])
                S.op("v_and_b32", t[2 * q + 1], sHi, P[q])
            for q in range(8):
                S.op("v_fma_f32", t[q], t[q], vRstd[sg], vNegm[sg])
            for q in range(4):
                S.op("v_cvt_pk_bf16_f32", P[q], t[2 * q], t[2 * q + 1])
            S.ds_write("ds_write_b128", vStW, P, offset=STG[i & 1] + 128 * sg, tag="stg")
            continue
        for q in range(4):
            S.op("v_dot2_f32_bf16", t[2 * q], P[q], sSelLo, vNegm[sg])
            S.op("v_dot2_f32_bf16", t[2 * q + 1], P[q], sSelHi, vNegm[sg])
        for q in range(4):
            S.op("v_cvt_pk_bf16_f32", P[q], t[2 * q], t[2 * q + 1])
        for q in range(4):
            S.op("v_lshlrev_b32", t[2 * q], 16, P[q])
            S.op("v_and_b32", t[2 * q + 1], sHi, P[q])
        for q in range(4):
            S.op("v_mul_f32", t[2 * q], t[2 * q], vRstd[sg])
            S.op("v_mul_f32", t[2 * q + 1], t[2 * q + 1], vRstd[sg])
        for q in range(4):
            S.op("v_cvt_pk_bf16_f32", P[q], t[2 * q], t[2 * q + 1])
        S.ds_write("ds_write_b128", vStW, P, offset=STG[i & 1] + 128 * sg, tag="stg")
    return S


class Tile:
    def __init__(self, acc, pat, tmps, slot, extra, kstride, rd2):
        self.acc, self.pat, self.tmps, self.slot = acc, pat, tmps, slot
        self.extra, self.kstride, self.rd2 = extra, kstride, rd2


def frag_reads(S, dst, tile, chunk, kappa, state, tag=None):
    key = (tile.pat.i, tile.tmps[0].i, chunk)
    addr = tile.tmps[chunk & 1]
    if key not in state["addr"]:
        state["addr"].add(key)
        S.op("v_add_u32", addr, tile.slot(chunk), tile.pat)
    off = tile.extra + kappa * tile.kstride
    S.ds_read("ds_read_b64_tr_b16", dst[0:2], addr, offset=off, tag=tag)
    S.ds_read("ds_read_b64_tr_b16", dst[2:4], addr, offset=off + tile.rd2, tag=tag)


def pass_slots(tiles, ring, chunks, first_chunk_zero, lookahead, visible, state):
    nt = len(tiles)
    seq = [(c, k, t) for c in chunks for k in range(4) for t in range(nt)]
    allseq = state["seq"]
    slots = []
    for (c, k, t) in seq:
        j = state["m"]
        S = Stream()
        while state["r"] <= min(j + lookahead, len(allseq) - 1) and visible(allseq[state["r"]][0]):
            cc_, kk, tt = allseq[state["r"]]
            frag_reads(S, ring[state["r"] % len(ring)], tiles[tt], cc_, kk, state)
            state["r"] += 1
        assert state["r"] > j, "fragment not read yet"
        tile = tiles[t]
        C = 0 if (c == first_chunk_zero and k == 0) else tile.acc
        S.mfma(tile.acc, ring[j % len(ring)], xn(4 * c + k), C)
        state["m"] += 1
        slots.append(S.ins)
    return slots


def new_pass_state(tiles, chunks):
    nt = len(tiles)
    return {"seq": [(c, k, t) for c in chunks for k in range(4) for t in range(nt)], "m": 0, "r": 0, "addr": set()}


def features(acc, kb, p, sc, phi, wA):
    S = Stream()
    for j in range(12, 16):
        S.op("v_and_b32", acc[j], vMask, acc[j])
    for q in range(8):
        S.op("v_cvt_pk_bf16_f32", kb[q], acc[2 * q], acc[2 * q + 1])
    S.mfma(p, wA[0:4], kb[0:4], 0)
    S.mfma(p, wA[4:8], kb[4:8], p)
    mark = len(S)
    if not OPT.nopround:
        for q in range(8):
            S.op("v_cvt_pk_bf16_f32", kb[q], p[2 * q], p[2 * q + 1])
        for q in range(8):
            S.op("v_lshlrev_b32", p[2 * q], 16, kb[q])
            S.op("v_and_b32", p[2 * q + 1], sHi, kb[q])
    mx, mn, t0, t1, sp, sm, ip2, im2 = [sc[i] for i in range(8)]
    S.op("v_max3_f32", mx, p[0], p[1], p[2])
    S.op("v_min3_f32", mn, p[0], p[1], p[2])
    for j in range(3, 15, 2):
        S.op("v_max3_f32", mx, mx, p[j], p[j + 1])
        S.op("v_min3_f32", mn, mn, p[j], p[j + 1])
    S.op("v_max_f32", mx, mx, p[15])
    S.op("v_min_f32", mn, mn, p[15])
    S.op("v_mov_b32", t0, mx)
    S.op("v_mov_b32", t1, mn)
    S.op("v_permlane32_swap_b32", mx, t0)
    S.op("v_permlane32_swap_b32", mn, t1)
    S.op("v_max_f32", mx, mx, t0)
    S.op("v_min_f32", mn, mn, t1)
    S.op("v_mul_f32", mx, sNL, mx)
    S.op("v_mul_f32", mn, sL, mn)
    E = acc
    for j in range(16):
        S.op("v_fma_f32", E[j], p[j], sL, mx)
        S.op("v_fma_f32", p[j], p[j], sNL, mn)
        S.op("v_exp_f32", E[j], E[j])
        S.op("v_exp_f32", p[j], p[j])
    S.op("v_add_f32", sp, E[12], E[13])
    S.op("v_add_f32", sm, p[12], p[13])
    S.op("v_add_f32", t0, E[14], E[15])
    S.op("v_add_f32", t1, p[14], p[15])
    S.op("v_add_f32", sp, sp, t0)
    S.op("v_add_f32", sm, sm, t1)
    S.op("v_fma_f32", sp, sp, vM01, E[0])
    S.op("v_fma_f32", sm, sm, vM01, p[0])
    S.op("v_add_f32", t0, E[1], E[2])
    S.op("v_add_f32", t1, p[1], p[2])
    for j in range(3, 12, 2):
        if j + 1 < 12:
            S.op("v_add_f32", sp, sp, E[j])
            S.op("v_add_f32", sm, sm, p[j])
            S.op("v_add_f32", t0, t0, E[j + 1])
            S.op("v_add_f32", t1, t1, p[j + 1])
        else:
            S.op("v_add_f32", sp, sp, E[j])
            S.op("v_add_f32", sm, sm, p[j])
    S.op("v_add_f32", sp, sp, t0)
    S.op("v_add_f32", sm, sm, t1)
    S.op("v_mov_b32", t0, sp)
    S.op("v_mov_b32", t1, sm)
    S.op("v_permlane32_swap_b32", sp, t0)
    S.op("v_permlane32_swap_b32", sm, t1)
    S.op("v_add_f32", sp, sp, t0)
    S.op("v_add_f32", sm, sm, t1)
    S.op("v_rcp_f32", sp, sp)
    S.op("v_rcp_f32", sm, sm)
    S.op("v_mul_f32", ip2, sp, vM01)
    S.op("v_mul_f32", im2, sm, vM01)
    for j in range(16):
        S.op("v_mul_f32", E[j], E[j], sp if j < 12 else ip2)
        S.op("v_mul_f32", p[j], p[j], sm if j < 12 else im2)
    for q in range(8):
        S.op("v_cvt_pk_bf16_f32", phi[q], E[2 * q], E[2 * q + 1])
    for q in range(8):
        S.op("v_cvt_pk_bf16_f32", phi[8 + q], p[2 * q], p[2 * q + 1])
    return S


def silu_tile(acc, tmp, hb, ustore):
    S = Stream()
    for j in range(8):
        S.op("v_mul_f32", tmp[j], sNL, acc[j])
    for j in range(8):
        S.op("v_exp_f32", tmp[j], tmp[j])
    for j in range(8):
        S.op("v_mul_f32", acc[j], acc[j], acc[8 + j])
    for j in range(8):
        S.op("v_add_f32", tmp[j], 1.0, tmp[j])
    for j in range(8):
        S.op("v_rcp_f32", tmp[j], tmp[j])
    for j in range(8):
        S.op("v_mul_f32", acc[j], acc[j], tmp[j])
    for q in range(4):
        S.op("v_cvt_pk_bf16_f32", hb[q], acc[2 * q], acc[2 * q + 1])
    ustore(S, hb)
    return S


def h_store(sLine, e_units):
    def f(S, hb):
        S.op("s_lshl_b32", sT1, sLine, 5)
        S.op("s_add_u32", sT1, sT1, sHst)
        mul, add = e_units
        if mul:
            S.op("s_mul_i32", sT2, sCh, mul * 1024)
            S.op("s_add_u32", sT1, sT1, sT2)
        if add:
            S.op("s_add_u32", sT1, sT1, add * 1024)
        S.buf_store("buffer_store_dwordx4", hb, vL16, SWS, sT1, mods="sc1", tag="hst")
    return f


def one_lane(S, fn):
    S.op("s_mov_b64", EXEC, 1)
    fn(S)
    S.op("s_mov_b64", EXEC, -1)


def stage_flag(S, value):
    S.op("v_mov_b32", vT0, value)
    S.op("s_lshl_b32", sT1, sW, 2)
    S.op("s_add_u32", sT1, sT1, sStat)
    S.op("v_mov_b32", vT1, 0)
    one_lane(S, lambda S: S.buf_store("buffer_store_dword", vT0, vT1, SWS, sT1, mods="sc1", tag="flag"))


def poll_loop(G, S, voff, srd, soff, cmp_op, cmp_val, mask, tmp):
    lab = G.lab("poll")
    done = lab + "_done"
    S.op(cmp_op, VCC, cmp_val, tmp)
    S.nop(1)
    S.raw(f"s_and_b32 s{sT1.i}, vcc_lo, 0x{mask:x}", size=8, kind="salu", reads=VCC.regs(), writes=sT1.regs() + SCC.regs())
    S.op("s_cmp_eq_u32", sT1, mask)
    S.begin_role("s_cbranch_scc1", done, reads=SCC.regs())
    S.op("s_mov_b32", sSpin, 200000)
    S.label(lab)
    S.raw("s_sleep 1", kind="ctrl")
    S.buf_load("buffer_load_dword", tmp, voff, srd, soff, mods="sc1")
    S.raw("s_waitcnt vmcnt(0)", kind="wait")
    S.fence(vm=True)
    S.op(cmp_op, VCC, cmp_val, tmp)
    S.nop(1)
    S.raw(f"s_and_b32 s{sT1.i}, vcc_lo, 0x{mask:x}", size=8, kind="salu", reads=VCC.regs(), writes=sT1.regs() + SCC.regs())
    S.op("s_cmp_eq_u32", sT1, mask)
    S.raw(f"s_cbranch_scc1 {done}", reads=SCC.regs())
    S.op("s_sub_u32", sSpin, sSpin, 1)
    S.op("s_cmp_lg_u32", sSpin, 0)
    S.raw(f"s_cbranch_scc1 {lab}", reads=SCC.regs())
    S.end_role(done)


def zero_init(G, S, typeA):
    lab = G.lab("zero")
    S.op("s_cmp_lg_u32", sW, 0)
    S.begin_role("s_cbranch_scc1", lab, reads=SCC.regs())
    z = v(POOL + 12, 4)
    for j in range(4):
        S.op("v_mov_b32", z[j], 0)
    S.op("s_mov_b64", EXEC, 0xFF)
    S.buf_store("buffer_store_dwordx4", z, vL16, SWS, sStat, mods="sc1", tag="zero")
    S.op("s_mov_b64", EXEC, -1)
    if typeA:
        S.op("v_lshrrev_b32", vT0, 5, vL)
        S.op("v_lshlrev_b32", vT0, 13, vT0)
        S.op("v_and_b32", vT2, 31, vL)
        S.op("v_lshl_add_u32", vT0, vT2, 4, vT0)
        S.op("s_lshl_b32", sT1, sM, 14)
        S.op("s_lshl_b32", sT2, sR, 9)
        S.op("s_add_u32", sT1, sT1, sT2)
        S.op("s_add_u32", sT1, sT1, WS_KV)
        S.buf_store("buffer_store_dwordx4", z, vT0, SWS, sT1, mods="sc1", tag="zero")
    S.mark_vm("zero")
    S.end_role(lab)


def zero_signal(G, S):
    lab = G.lab("zsig")
    S.op("s_cmp_lg_u32", sW, 0)
    S.begin_role("s_cbranch_scc1", lab, reads=SCC.regs())
    S.wait_vm_since("zero")
    S.op("v_mov_b32", vT0, 1)
    S.op("v_mov_b32", vT1, 0)
    S.op("s_and_b32", sT1, sWG, 3)
    S.op("s_lshl_b32", sT1, sT1, 6)
    one_lane(S, lambda S: S.buf_store("buffer_atomic_add", vT0, vT1, SDBG, sT1, tag="zat"))
    S.end_role(lab)


vZpoll = v(POOL + 62)
vZoff = v(POOL + 61)


def z_poll_issue(S, tmp, off):
    S.op("v_lshlrev_b32", off, 6, vL)
    S.buf_load("buffer_load_dword", tmp, off, SDBG, 0, mods="sc1", tag="zp")


def z_poll_check(G, S, tmp, off):
    poll_loop(G, S, off, SDBG, 0, "v_cmp_le_u32", 64, 0xF, tmp)


def p1_common_start(G, typeA):
    S = G.S
    S.op("s_and_b32", sT1, sW, 3)
    S.op("s_lshl_b32", s(27), sT1, 10)
    S.op("v_add_u32", vT2, s(27), vL16)
    S.op("s_mul_i32", sT0, sM, 2 * 1568)
    S.extend(dma_group(vT2, SPHI, [], sT0, AUX, "phi", wave_term=s(27)))


def phase1(G, typeA):
    S = G.S
    P = POOL
    zero_init(G, S, typeA)
    p1_common_start(G, typeA)
    if typeA:
        slot = lambda j: RING + 16384 * j
        accK, accV = v(P, 16), v(P + 16, 16)
        ringP1 = [v(P + 32, 4), v(P + 36, 4)]
        for j in range(7):
            S.extend(g_qkv(j, 896, slot(j), f"w{j}"))
            S.extend(g_qkv(j, 1792, slot(j) + 8192, f"w{j}"))
        tilesP1 = [Tile(accK, vQ, [vT2, vT3], slot, 0, 2048, 512),
                   Tile(accV, vQ, [vT2, vT3], slot, 8192, 2048, 512)]
    else:
        qslot = lambda j: RING + 8192 * j
        p2slot = {0: RING + 57344, 1: RING + 57344 + 16384, 2: RING + 57344 + 32768, 3: RING, 4: RING + 16384,
                  5: RING + 32768, 6: STG[1]}
        accQ = v(P, 16)
        ringP1 = [v(P + 32, 4), v(P + 36, 4)]
        for j in range(7):
            S.extend(g_qkv(j, 0, qslot(j), f"w{j}"))
        for j in range(3):
            for g in g_line(j, sLineA, p2slot[j], f"a{j}"):
                S.extend(g)
        tilesP1 = [Tile(accQ, vQ, [vT2, vT3], qslot, 0, 2048, 512)]
    if typeA:
        S.op("s_cmp_eq_u32", sCh, 0)
        for k in range(4):
            S.op("s_cselect_b32", SWH[k], SW1[k], SW3[k]) if k < 3 else S.op("s_mov_b32", SWH[3], 0x20000)
    stamp(S, 2)
    ln_stats(S)
    stamp(S, 3)
    S.extend(ln_norm(0))
    dump(G, S, "stats", [vNegm[0], vRstd[0], vNegm[1], vRstd[1]])
    S.wait_vm_tag("w0", "phi")
    S.wait_lgkm_tag("stg")
    S.barrier()
    stamp(S, 4)
    cstamp(S, 20)
    for k in range(2):
        for rd in range(2):
            S.ds_read("ds_read_b64_tr_b16", vPhiA[4 * k + 2 * rd:4 * k + 2 * rd + 2], vPhiAddr,
                      offset=896 * k + 448 * rd)
    st = new_pass_state(tilesP1, range(7))
    for i in range(7):
        for k in range(4):
            S.ds_read("ds_read_b128", xn(4 * i + k), vStR[k], offset=STG[i & 1])
        slots = pass_slots(tilesP1, ringP1, [i], 0, 1, lambda c: c <= i, st)
        fill = []
        if i + 1 < 7:
            fill += groups_of(ln_norm(i + 1))
        dm = []
        if typeA:
            if i >= 1:
                dm += g_line(i - 1, sLineA, slot(i - 1), f"a{i - 1}")
        else:
            if i == 2:
                dm += g_line(3, sLineA, p2slot[3], "a3")
            if i == 4:
                dm += g_line(4, sLineA, p2slot[4], "a4")
            if i == 6:
                dm += g_line(5, sLineA, p2slot[5], "a5") + g_line(6, sLineA, p2slot[6], "a6")
        if i == 1:
            Z = Stream()
            zero_signal(G, Z)
            dm.append(Z.ins)
        if i == 5:
            Z = Stream()
            z_poll_issue(Z, vZpoll, vZoff)
            dm.append(Z.ins)
        head = fill[:24]
        S.extend(slots[0][:-1])
        slots[0] = slots[0][-1:]
        for g in dm:
            S.extend(g)
        for g in head:
            S.extend(g)
        S.extend(weave(slots, fill[24:]))
        if i == 6:
            z_poll_check(G, S, vZpoll, vZoff)
        if i + 1 < 7:
            S.wait_vm_tag(f"w{i + 1}")
            S.wait_lgkm_tag("stg")
        else:
            S.wait_vm_tag("a0", "a1")
        S.barrier()
        cstamp(S, 21 + i)
    if OPT.debug:
        tmp = v(P + 40, 4)
        for stp in (0, 5, 27):
            for q in range(4):
                S.op("v_accvgpr_read_b32", tmp[q], xn(stp)[q])
            dump(G, S, f"xn{stp}", reglist(tmp))
        dump(G, S, "acc0", reglist(v(P, 16)))
        if typeA:
            dump(G, S, "acc1", reglist(v(P + 16, 16)))
        else:
            dump(G, S, "acc1", reglist(v(P, 16)))
    if OPT.stop_after == "p1":
        return
    stamp(S, 5)
    if typeA:
        phase1A_rest(G, slot, accK, accV)
    else:
        phase1B_rest(G, p2slot, accQ)


def phase1A_rest(G, slot, accK, accV):
    S = G.S
    P = POOL
    XR = XRAW
    acc2 = [v(XR, 16), v(XR + 16, 16)]
    ring = [v(XR + 32 + 4 * i, 4) for i in range(4)]
    kb = v(XR + 48, 8)
    p = v(P + 32, 16)
    sc = v(P + 44 + 4, 4)
    sc = [v(P + 48), v(P + 49), v(P + 50), v(P + 51), v(P + 60), v(P + 61), v(P + 62), v(P + 63)]
    tiles = [Tile(acc2[e], vF[e], [vStR[2 * e], vStR[2 * e + 1]], slot, 0, 2048, 512) for e in range(2)]
    Fv = Stream()
    for j in range(12, 16):
        Fv.op("v_and_b32", accV[j], vMask, accV[j])
    Fv.op("v_or_b32", accV[12], vOne, accV[12])
    vb = p[0:8]
    for q in range(8):
        Fv.op("v_cvt_pk_bf16_f32", vb[q], accV[2 * q], accV[2 * q + 1])
    Fv.op("v_and_b32", vT0, 31, vL)
    Fv.op("v_bfe_u32", vT1, vL, 1, 3)
    Fv.op("v_lshrrev_b32", vT2, 5, vL)
    Fv.op("v_xor_b32", vT1, vT1, vT2)
    Fv.op("v_lshlrev_b32", vT1, 3, vT1)
    Fv.op("v_lshl_add_u32", vT1, vT0, 6, vT1)
    Fv.op("s_lshl_b32", sT1, sCh, 13)
    Fv.op("s_lshl_b32", sT2, sTg, 11)
    Fv.op("s_add_u32", sT1, sT1, sT2)
    Fv.op("s_add_u32", sT1, sT1, V_IMG)
    Fv.op("v_add_u32", vT1, sT1, vT1)
    for i in range(4):
        Fv.op("v_xor_b32", vT3, 16 * i, vT1)
        Fv.ds_write("ds_write_b64", vT3, vb[2 * i:2 * i + 2], tag="img")
    phi = accV
    Fk = features(accK, kb, p, sc, phi, vPhiA)
    Fw = Stream()
    Fw.op("v_and_b32", vT0, 31, vL)
    Fw.op("v_and_b32", vT1, 15, vL)
    Fw.op("v_lshrrev_b32", vT2, 5, vL)
    Fw.op("v_xor_b32", vT1, vT1, vT2)
    Fw.op("v_lshlrev_b32", vT1, 3, vT1)
    Fw.op("v_lshl_add_u32", vT1, vT0, 7, vT1)
    Fw.op("s_lshl_b32", sT1, sCh, 14)
    Fw.op("s_lshl_b32", sT2, sTg, 12)
    Fw.op("s_add_u32", sT1, sT1, sT2)
    Fw.op("s_add_u32", sT1, sT1, PHI_IMG)
    Fw.op("v_add_u32", vT1, sT1, vT1)
    for T in range(2):
        for i in range(4):
            Fw.op("v_xor_b32", vT3, (8 * T + 2 * i) * 8, vT1)
            Fw.ds_write("ds_write_b64", vT3, phi[8 * T + 2 * i:8 * T + 2 * i + 2], tag="img")
    fill = groups_of(Fv) + groups_of(Fk) + groups_of(Fw)
    if OPT.debug:
        D = Stream()
        dump(G, D, "phi", reglist(phi))
        fill.append(D.ins)
    nfill_ep = 4
    per = -(-len(fill) // nfill_ep)
    st = new_pass_state(tiles, range(7))
    acc3 = accK
    for i in range(7):
        slots = pass_slots(tiles, ring, [i], 0, 3, lambda c: c <= i + 1, st)
        f = fill[i * per:(i + 1) * per] if i < nfill_ep else []
        dm = []
        if i == 0:
            dm += g_line(6, sLineA, slot(6), "a6")
        if i >= 1:
            dm.append(g_half(i - 1, sLineB, slot(i - 1), f"b{i - 1}"))
        if i == 4:
            K_ = Stream()
            kv_gemm(G, K_)
            f = [K_.ins]
        for g in dm:
            S.extend(g)
        S.extend(weave(slots, f))
        if i + 2 < 7:
            S.wait_vm_tag(f"a{i + 2}")
        if i == nfill_ep - 1:
            S.wait_lgkm_tag("img")
        if i == 6:
            S.wait_vm_tag("b0", "b1")
        S.barrier()
        cstamp(S, 28 + i)
    stamp(S, 6)
    S.extend(g_half(6, sLineB, slot(6), "b6"))
    if OPT.debug:
        dump(G, S, "acc2", reglist(acc2[0]) + reglist(acc2[1]))
    tiles3 = [Tile(acc3, vFh, [vStR[0], vStR[1]], slot, 0, 1024, 256)]
    tmp = p[0:8]
    hb = [p[8:12], p[12:16]]
    F = Stream()
    for e in range(2):
        F.extend(silu_tile(acc2[e], tmp, hb[e], h_store(sLineA, (2, e))))
    fill = groups_of(F)
    per = -(-len(fill) // 4)
    st = new_pass_state(tiles3, range(7))
    for i in range(7):
        slots = pass_slots(tiles3, ring, [i], 0, 3, lambda c: c <= i + 1, st)
        f = fill[i * per:(i + 1) * per] if i < 4 else []
        S.extend(weave(slots, f))
        if i == 1:
            kv_flag(G, S)
        if i == 5:
            S.wait_vm_tag("hst")
            stage_flag(S, 1)
        if i + 2 < 7:
            S.wait_vm_tag(f"b{i + 2}")
        S.barrier()
        cstamp(S, 35 + i)
    stamp(S, 7)
    S.extend(silu_tile(acc3, tmp, hb[0], h_store(sLineB, (1, 0))))
    S.wait_vm_tag("hst")
    stage_flag(S, 2)


def kv_gemm(G, S):
    P = POOL
    lab = G.lab("kv")
    S.op("s_lshr_b32", sT1, sTg, 1)
    S.op("s_cmp_lg_u32", sT1, sCh)
    S.begin_role("s_cbranch_scc1", lab, reads=SCC.regs())
    D = v(P, 16)
    A = [v(P + 32, 4), v(P + 36, 4)]
    B = [v(P + 40, 4), v(P + 44, 4)]
    aA0, aA1, aB0, aB1 = vT0, vT1, vT2, vT3
    t0, t1, t2 = v(P + 48), v(P + 49), v(P + 50)
    S.op("v_bfe_u32", t0, vL, 2, 2)
    S.op("v_lshrrev_b32", t1, 5, vL)
    S.op("v_lshl_add_u32", t0, t1, 2, t0)
    S.op("v_bfe_u32", t1, vL, 4, 1)
    S.op("v_and_b32", t2, 3, vL)
    S.op("v_lshl_add_u32", t1, t1, 2, t2)
    S.op("s_and_b32", sT1, sTg, 1)
    S.op("s_lshl_b32", sT1, sT1, 3)
    S.op("v_add_u32", t2, sT1, t1)
    S.op("v_xor_b32", t2, t2, t0)
    S.op("v_lshlrev_b32", t2, 3, t2)
    S.op("v_lshl_add_u32", t2, t0, 7, t2)
    S.op("s_lshl_b32", sT2, sCh, 14)
    S.op("v_add_u32", aA0, sT2, t2)
    S.op("v_xor_b32", aA1, 64, aA0)
    S.op("v_lshrrev_b32", t2, 1, t0)
    S.op("v_xor_b32", t2, t2, t1)
    S.op("v_lshlrev_b32", t2, 3, t2)
    S.op("v_lshl_add_u32", t2, t0, 6, t2)
    S.op("s_lshl_b32", sT2, sCh, 13)
    S.op("s_add_u32", sT2, sT2, V_IMG)
    S.op("v_add_u32", aB0, sT2, t2)
    S.op("v_xor_b32", aB1, 32, aB0)
    for k in range(8):
        aa, bb = A[k & 1], B[k & 1]
        S.ds_read("ds_read_b64_tr_b16", aa[0:2], aA0, offset=PHI_IMG + 2048 * k)
        S.ds_read("ds_read_b64_tr_b16", aa[2:4], aA1, offset=PHI_IMG + 2048 * k + 1024)
        S.ds_read("ds_read_b64_tr_b16", bb[0:2], aB0, offset=1024 * k)
        S.ds_read("ds_read_b64_tr_b16", bb[2:4], aB1, offset=1024 * k + 512)
        S.mfma(D, aa, bb, 0 if k == 0 else D)
    S.op("s_lshl_b32", sT1, sM, 1)
    S.op("s_add_u32", sT1, sT1, sCh)
    S.op("s_lshl_b32", sT1, sT1, 13)
    S.op("s_and_b32", sT2, sTg, 1)
    S.op("s_lshl_b32", sT2, sT2, 12)
    S.op("s_add_u32", sT1, sT1, sT2)
    S.op("s_add_u32", sT1, sT1, WS_KV)
    for rho in range(16):
        S.buf_store("buffer_atomic_add_f32", D[rho], vL4, SWS, sT1, offset=256 * rho, tag="kvat")
    S.mark_vm("kvat")
    S.end_role(lab)


def kv_flag(G, S):
    lab = G.lab("kvf")
    S.op("s_lshr_b32", sT1, sTg, 1)
    S.op("s_cmp_lg_u32", sT1, sCh)
    S.begin_role("s_cbranch_scc1", lab, reads=SCC.regs())
    S.wait_vm_since("kvat")
    S.op("v_mov_b32", vT0, 1)
    S.op("v_mov_b32", vT1, 0)
    S.op("s_and_b32", sT2, sTg, 1)
    S.op("s_lshl_b32", sT1, sCh, 1)
    S.op("s_add_u32", sT1, sT1, sT2)
    S.op("s_lshl_b32", sT1, sT1, 2)
    S.op("s_add_u32", sT1, sT1, sStat)
    S.op("s_add_u32", sT1, sT1, 32)
    one_lane(S, lambda S: S.buf_store("buffer_store_dword", vT0, vT1, SWS, sT1, mods="sc1", tag="flag"))
    S.end_role(lab)


def phase1B_rest(G, p2slot, accQ):
    S = G.S
    P = POOL
    XR = XRAW
    acc2 = [v(XR, 16), v(XR + 16, 16)]
    ring = [v(XR + 32 + 4 * i, 4) for i in range(4)]
    kb = v(XR + 48, 8)
    p = v(P + 32, 16)
    sc = [v(P + 48), v(P + 49), v(P + 50), v(P + 51), v(P + 60), v(P + 61), v(P + 62), v(P + 63)]
    phi = v(P + 16, 16)
    tiles = [Tile(acc2[e], vF[e], [vStR[2 * e], vStR[2 * e + 1]], lambda c: p2slot[c], 0, 2048, 512) for e in range(2)]
    fill = groups_of(features(accQ, kb, p, sc, phi, vPhiA))
    if OPT.debug:
        D = Stream()
        dump(G, D, "phi", reglist(phi))
        fill.append(D.ins)
    per = -(-len(fill) // 4)
    p3slot = {0: p2slot[0], 1: p2slot[1], 2: p2slot[2], 3: p2slot[3], 4: p2slot[4], 5: p2slot[5], 6: STG[0]}
    st = new_pass_state(tiles, range(7))
    for i in range(7):
        slots = pass_slots(tiles, ring, [i], 0, 3, lambda c: c <= i + 1, st)
        f = fill[i * per:(i + 1) * per] if i < 4 else []
        dm = []
        if i == 0:
            dm += g_line(6, sLineB, p3slot[6], "b6")
        if i >= 1:
            dm += g_line(i - 1, sLineB, p3slot[i - 1], f"b{i - 1}") if i - 1 < 6 else []
        for g in dm:
            S.extend(g)
        S.extend(weave(slots, f))
        if i + 2 < 7:
            S.wait_vm_tag(f"a{i + 2}")
        if i == 6:
            S.wait_vm_tag("b0", "b1")
        S.barrier()
        cstamp(S, 28 + i)
    if OPT.debug:
        dump(G, S, "acc2", reglist(acc2[0]) + reglist(acc2[1]))
    stamp(S, 6)
    acc3 = [accQ, v(P + 32, 16)]
    tmp = v(XR + 48, 8)
    hb = [v(P + 52, 4), v(P + 56, 4)]
    tiles3 = [Tile(acc3[e], vF[e], [vStR[2 * e], vStR[2 * e + 1]], lambda c: p3slot[c], 0, 2048, 512) for e in range(2)]
    F = Stream()
    for e in range(2):
        F.extend(silu_tile(acc2[e], tmp, hb[e], h_store(sLineA, (2, e))))
    fill = groups_of(F)
    per = -(-len(fill) // 4)
    st = new_pass_state(tiles3, range(7))
    for i in range(7):
        slots = pass_slots(tiles3, ring, [i], 0, 3, lambda c: c <= i + 1, st)
        f = fill[i * per:(i + 1) * per] if i < 4 else []
        S.extend(weave(slots, f))
        if i == 5:
            S.wait_vm_tag("hst")
            stage_flag(S, 1)
        if i + 2 < 7:
            S.wait_vm_tag(f"b{i + 2}")
        S.barrier()
        cstamp(S, 35 + i)
    stamp(S, 7)
    for e in range(2):
        S.extend(silu_tile(acc3[e], tmp, hb[e], h_store(sLineB, (2, e))))
    off, pv = v(XR), v(XR + 1)
    S.op("v_lshrrev_b32", off, 1, vL)
    S.op("v_lshlrev_b32", off, 11, off)
    S.op("v_and_b32", pv, 1, vL)
    S.op("v_lshl_add_u32", off, pv, 2, off)
    S.op("s_lshl_b32", sT1, sM, 8)
    S.op("s_lshl_b32", sT2, sCh, 3)
    S.op("s_add_u32", sT1, sT1, sT2)
    S.op("s_add_u32", sPoll, sT1, WS_ST + 32)
    S.buf_load("buffer_load_dword", pv, off, SWS, sPoll, mods="sc1", tag="kvp")
    S.wait_vm_tag("hst")
    stage_flag(S, 2)
    poll_loop(G, S, off, SWS, sPoll, "v_cmp_eq_u32", 1, 0xFFFFFFFF, pv)
    stamp(S, 15)
    KVL = [RING + 49152, RING + 106496]
    S.op("s_lshl_b32", sT0, sM, 1)
    S.op("s_add_u32", sT0, sT0, sCh)
    S.op("s_lshl_b32", sT0, sT0, 13)
    S.op("s_lshl_b32", sT1, sTg, 11)
    S.op("s_add_u32", sT0, sT0, sT1)
    S.op("s_add_u32", sT0, sT0, WS_KV)
    S.op("s_mul_i32", sT2, sCh, KVL[1] - KVL[0])
    S.op("s_add_u32", sT2, sT2, sT1)
    for k in range(2):
        S.op("s_add_u32", M0, sT2, KVL[0])
        S.dma(vL16, SWS, sT0, offset=1024 * k, mods="sc1", tag="kvl")
    S.wait_vm_tag("kvl")
    S.barrier()
    kvr = v(XR, 32)
    S.op("s_mul_i32", sT2, sCh, KVL[1] - KVL[0])
    S.op("s_add_u32", sT2, sT2, KVL[0])
    S.op("v_add_u32", vT0, sT2, vL4)
    for q in range(16):
        S.ds_read2st64(kvr[2 * q:2 * q + 2], vT0, 2 * q, 2 * q + 1)
    kvb = v(XR + 32, 16)
    for q in range(16):
        S.op("v_cvt_pk_bf16_f32", kvb[q], kvr[2 * q], kvr[2 * q + 1])
    D = v(P, 16)
    for k in range(4):
        S.mfma(D, kvb[4 * k:4 * k + 4], phi[4 * k:4 * k + 4], 0 if k == 0 else D)
    den, t = vT0, vT1
    S.op("v_mov_b32", den, D[12])
    S.op("v_mov_b32", t, D[12])
    S.op("v_permlane32_swap_b32", den, t)
    S.op("v_add_f32", t, 1e-6, t)
    S.op("v_rcp_f32", t, t)
    for j in range(16):
        S.op("v_mul_f32", D[j], D[j], t)
    for j in range(12, 16):
        S.op("v_and_b32", D[j], vMask, D[j])
    ob = v(XR, 8)
    for q in range(8):
        S.op("v_cvt_pk_bf16_f32", ob[q], D[2 * q], D[2 * q + 1])
    S.op("s_lshl_b32", sT1, sR, 2)
    S.op("s_add_u32", sT1, sT1, sTg)
    S.op("s_lshl_b32", sT1, sT1, 4)
    S.op("s_lshl_b32", sT2, sM, 1)
    S.op("s_add_u32", sT1, sT1, sT2)
    S.op("s_add_u32", sT1, sT1, sCh)
    S.op("s_lshl_b32", sT1, sT1, 11)
    S.op("s_add_u32", sT1, sT1, WS_O)
    S.buf_store("buffer_store_dwordx4", ob[0:4], vL16, SWS, sT1, mods="sc1", tag="ost")
    S.buf_store("buffer_store_dwordx4", ob[4:8], vL16, SWS, sT1, offset=1024, mods="sc1", tag="ost")
    S.wait_vm_tag("ost")
    stage_flag(S, 3)


STAGE1 = [8, 9, 10, 11, 0, 1, 2, 3, 16, 17, 18, 19, 20, 21, 22, 23]
STAGE2 = [12, 13, 4, 5, 6, 7, 14, 15, 24, 25, 26, 27]
WO_L = 0
W2_L = 65536
NW2 = 12


def phase2(G):
    S = G.S
    S.wait_all()
    S.barrier()
    stamp(S, 8)
    S.op("s_cmp_eq_u32", sP2, 0)
    S.raw("s_cbranch_scc1 L_FIN", reads=SCC.regs())
    S.op("s_and_b32", sKq, sW, 3)
    S.op("s_lshr_b32", sU, sW, 2)
    vDw, vW = v(9), [v(10), v(11)]
    vXo, vRed = v(12), v(13)
    t0, t1, t2 = vT0, vT1, vT2
    S.op("v_lshrrev_b32", t0, 3, vL)
    S.op("v_bfe_u32", t1, t0, 1, 1)
    S.op("v_lshlrev_b32", t1, 2, t1)
    S.op("v_and_b32", t2, 7, vL)
    S.op("v_xor_b32", t1, t1, t2)
    S.op("s_lshl_b32", sT1, sU, 3)
    S.op("v_add_u32", t0, sT1, t0)
    S.op("v_mul_u32_u24", t0, 896, t0)
    S.op("v_lshl_add_u32", t0, t1, 4, t0)
    S.op("s_lshl_b32", sT1, sCb, 7)
    S.op("v_add_u32", vDw, sT1, t0)
    S.op("v_bfe_u32", t0, vL, 2, 2)
    S.op("v_lshrrev_b32", t1, 5, vL)
    S.op("v_lshl_add_u32", t1, t1, 2, t0)
    S.op("v_lshrrev_b32", t0, 1, t0)
    S.op("v_lshlrev_b32", t0, 6, t0)
    S.op("v_lshl_add_u32", t0, t1, 7, t0)
    S.op("v_bfe_u32", t1, vL, 4, 1)
    S.op("v_lshl_add_u32", t0, t1, 5, t0)
    S.op("v_and_b32", t1, 3, vL)
    S.op("v_lshl_add_u32", vW[0], t1, 3, t0)
    S.op("v_xor_b32", vW[1], 64, vW[0])
    vWo = [v(14), v(15)]
    S.op("s_lshl_b32", sT1, sKq, 14)
    for c in range(2):
        S.op("v_add_u32", vWo[c], sT1, vW[c])
    S.op("s_lshl_b32", sT1, sKq, 11)
    S.op("s_add_u32", sT1, sT1, W2_L)
    vWh = [v(6), v(7)]
    for c in range(2):
        S.op("v_add_u32", vW[c], sT1, vW[c])
        S.op("v_add_u32", vWh[c], 7 * 8192, vW[c])
    S.op("s_lshr_b32", sT1, sTb, 1)
    S.op("s_lshl_b32", sT1, sT1, 2)
    S.op("s_and_b32", sT2, sTb, 1)
    S.op("s_lshl_b32", sT2, sT2, 1)
    S.op("s_add_u32", sT1, sT1, sT2)
    S.op("s_add_u32", sT1, sT1, sU)
    S.op("s_mul_i32", sHld, sT1, 112 * 1024)
    S.op("s_mul_i32", sT2, sKq, 28 * 1024)
    S.op("s_add_u32", sHld, sHld, sT2)
    S.op("s_lshl_b32", sOld, sT1, 15)
    S.op("s_lshl_b32", sT2, sKq, 13)
    S.op("s_add_u32", sOld, sOld, sT2)
    S.op("s_add_u32", sOld, sOld, WS_O)
    S.op("s_mul_i32", sW2o, sKq, 448 * 896)
    S.op("s_lshl_b32", s(22), sKq, 14)
    S.op("s_lshl_b32", sT1, sU, 10)
    S.op("s_add_u32", s(22), s(22), sT1)
    S.op("s_lshl_b32", s(23), sKq, 11)
    S.op("s_add_u32", s(23), s(23), sT1)
    order = STAGE1 + STAGE2

    def w2_group(n):
        lam = order[n]
        return dma_group(vDw, SW2, [lambda S: S.op("s_add_u32", sT0, sW2o, lam * 16 * 896)], sT0,
                         W2_L + 8192 * (n % NW2), f"W{n}", wave_term=s(23))

    for n in range(NW2):
        S.extend(w2_group(n))
    S.op("s_mul_i32", s(24), sKq, 112 * 896)
    for pz in range(8):
        S.extend(dma_group(vDw, SWO, [lambda S: S.op("s_add_u32", sT0, s(24), pz * 16 * 896)], sT0,
                           WO_L + 2048 * pz, "wo", wave_term=s(22)))
    xr = v(24, 4)
    S.op("v_and_b32", t0, 31, vL)
    S.op("s_lshl_b32", sT1, sTb, 6)
    S.op("s_lshl_b32", sT2, sU, 5)
    S.op("s_add_u32", sT1, sT1, sT2)
    S.op("v_add_u32", t0, sT1, t0)
    S.op("v_mul_u32_u24", t0, 896, t0)
    S.op("s_lshl_b32", sT1, sCb, 7)
    S.op("s_lshl_b32", sT2, sKq, 5)
    S.op("s_add_u32", sT1, sT1, sT2)
    S.op("v_add_u32", t0, sT1, t0)
    S.op("v_lshrrev_b32", t1, 5, vL)
    S.op("v_lshl_add_u32", vXo, t1, 3, t0)
    S.op("v_lshl_add_u32", v(3), t1, 4, t0)
    S.buf_load("buffer_load_dwordx2", xr[0:2], vXo, SX, 0, tag="xr")
    S.buf_load("buffer_load_dwordx2", xr[2:4], vXo, SX, 0, offset=16, tag="xr")
    off, pv = v(4), v(5)
    S.op("v_bfe_u32", t0, vL, 2, 1)
    S.op("v_lshlrev_b32", t0, 8, t0)
    S.op("v_bfe_u32", t1, vL, 1, 1)
    S.op("v_lshl_add_u32", t0, t1, 7, t0)
    S.op("v_and_b32", t1, 1, vL)
    S.op("v_lshl_add_u32", off, t1, 4, t0)
    S.op("s_lshr_b32", sT1, sTb, 1)
    S.op("s_lshl_b32", sT1, sT1, 11)
    S.op("s_lshl_b32", sT2, sKq, 9)
    S.op("s_add_u32", sT1, sT1, sT2)
    S.op("s_and_b32", sT2, sTb, 1)
    S.op("s_lshl_b32", sT2, sT2, 1)
    S.op("s_add_u32", sT2, sT2, sU)
    S.op("s_lshl_b32", sT2, sT2, 2)
    S.op("s_add_u32", sT1, sT1, sT2)
    S.op("s_add_u32", sPoll, sT1, WS_ST)

    def poll(stage, mask):
        S.buf_load("buffer_load_dword", pv, off, SWS, sPoll, mods="sc1", tag="fp")
        poll_loop(G, S, off, SWS, sPoll, "v_cmp_le_u32", stage, mask, pv)

    def hload(n):
        S.op("s_add_u32", sT0, sHld, order[n] * 1024)
        S.buf_load("buffer_load_dwordx4", a(4 * n, 4), vL16, SWS, sT0, mods="sc1", tag=f"h{n}")

    accO = [v(32, 16), v(48, 16)]
    accS = [v(64, 16), v(80, 16)]
    ring = [v(96 + 4 * i, 4) for i in range(8)]
    poll(1, 0xFF)
    stamp(S, 9)
    for n in range(16):
        hload(n)
    S.wait_vm_tag(*[f"W{n}" for n in range(NW2)], "wo")
    S.barrier()
    stamp(S, 10)
    cstamp(S, 42)
    rp = 0

    def areads(n, c):
        nonlocal rp
        dst = ring[rp % 8]
        rp += 1
        sl = n % NW2
        ad = vW[c] if sl < 7 else vWh[c]
        off_ = 8192 * (sl if sl < 7 else sl - 7)
        S.ds_read("ds_read_b64_tr_b16", dst[0:2], ad, offset=off_)
        S.ds_read("ds_read_b64_tr_b16", dst[2:4], ad, offset=off_ + 1024)
        return dst

    for q in range(7):
        if q == 3:
            poll(2, 0xFF)
            for n in range(16, 28):
                hload(n)
        if q >= 1:
            for n in range(4 * (q - 1) + NW2, min(4 * q + NW2, 28)):
                S.extend(w2_group(n))
        fr = {}
        for n in range(4 * q, 4 * q + 4):
            for c in range(2):
                fr[(n, c)] = areads(n, c)
        for n in range(4 * q, 4 * q + 4):
            for c in range(2):
                S.mfma(accO[c], fr[(n, c)], a(4 * n, 4), 0 if n == 0 else accO[c])
        nxt = [f"W{n}" for n in range(4 * (q + 1), min(4 * (q + 2), 28)) if n >= NW2]
        if nxt:
            S.wait_vm_tag(*nxt)
        S.barrier()
        cstamp(S, 43 + q)
    stamp(S, 11)
    RED_O, RED_S = W2_L, 0
    vRedO = v(8)
    S.op("s_mul_i32", sT1, sU, 4 * 4 * 2048)
    S.op("s_lshl_b32", sT2, sKq, 11)
    S.op("s_add_u32", sT1, sT1, sT2)
    S.op("v_add_u32", vRed, sT1, vL16)
    S.op("v_add_u32", vRedO, RED_O, vRed)

    def red_put(acc, base):
        ad = vRedO if base == RED_O else vRed
        for pi in range(4):
            c, e = pi >> 1, pi & 1
            for hh in range(2):
                S.ds_write("ds_write_b128", ad, acc[c][8 * e + 4 * hh:8 * e + 4 * hh + 4],
                           offset=pi * 8192 + hh * 1024, tag="red")

    red_put(accO, RED_O)
    poll(3, 0xCC)
    stamp(S, 12)
    for n in range(8):
        S.op("s_add_u32", sT0, sOld, n * 1024)
        S.buf_load("buffer_load_dwordx4", a(4 * n, 4), vL16, SWS, sT0, mods="sc1", tag=f"o{n}")
    for n in range(8):
        hh, k = n >> 1, n & 1
        row0 = 28 * hh + 16 * k
        fr = []
        for c in range(2):
            dst = ring[(2 * n + c) % 8]
            S.ds_read("ds_read_b64_tr_b16", dst[0:2], vWo[c], offset=WO_L + row0 * 128)
            S.ds_read("ds_read_b64_tr_b16", dst[2:4], vWo[c], offset=WO_L + row0 * 128 + 1024)
            fr.append(dst)
        for c in range(2):
            S.mfma(accS[c], fr[c], a(4 * n, 4), 0 if n == 0 else accS[c])
    S.wait_lgkm_tag("red")
    S.barrier()
    stamp(S, 13)
    red_put(accS, RED_S)
    vRd = v(14)
    S.op("s_mul_i32", sT1, sU, 4 * 4 * 2048)
    S.op("s_lshl_b32", sT2, sKq, 13)
    S.op("s_add_u32", sT1, sT1, sT2)
    S.op("v_add_u32", vRd, sT1, vL16)
    vRdO = v(15)
    S.op("v_add_u32", vRdO, RED_O, vRd)
    o_parts = [v(96 + 8 * k, 8) for k in range(4)]
    for src in range(4):
        for hh in range(2):
            S.ds_read("ds_read_b128", o_parts[src][4 * hh:4 * hh + 4], vRdO, offset=src * 2048 + hh * 1024)
    og = v(32, 8)
    for j in range(8):
        S.op("v_add_f32", og[j], o_parts[0][j], o_parts[1][j])
    for j in range(8):
        S.op("v_add_f32", o_parts[2][j], o_parts[2][j], o_parts[3][j])
    for j in range(8):
        S.op("v_add_f32", og[j], og[j], o_parts[2][j])
    tmp = v(40, 8)
    for j in range(8):
        S.op("v_mul_f32", tmp[j], sNL, og[j])
    for j in range(8):
        S.op("v_exp_f32", tmp[j], tmp[j])
    for j in range(8):
        S.op("v_add_f32", tmp[j], 1.0, tmp[j])
    for j in range(8):
        S.op("v_rcp_f32", tmp[j], tmp[j])
    for j in range(8):
        S.op("v_mul_f32", og[j], og[j], tmp[j])
    xf = v(48, 8)
    for q in range(4):
        S.op("v_lshlrev_b32", xf[2 * q], 16, xr[q])
        S.op("v_and_b32", xf[2 * q + 1], sHi, xr[q])
    S.wait_lgkm_tag("red")
    S.barrier()
    for src in range(4):
        for hh in range(2):
            S.ds_read("ds_read_b128", o_parts[src][4 * hh:4 * hh + 4], vRd, offset=src * 2048 + hh * 1024)
    sv = v(56, 8)
    for j in range(8):
        S.op("v_add_f32", sv[j], o_parts[0][j], o_parts[1][j])
    for j in range(8):
        S.op("v_add_f32", o_parts[2][j], o_parts[2][j], o_parts[3][j])
    for j in range(8):
        S.op("v_add_f32", sv[j], sv[j], o_parts[2][j])
    if OPT.debug:
        dump(G, S, "sv", reglist(sv) + reglist(og))
    for j in range(8):
        S.op("v_fma_f32", sv[j], sv[j], og[j], xf[j])
    if OPT.perturb:
        lab = G.lab("pert")
        S.op("s_lshl_b32", sT1, sWG, 3)
        S.op("s_add_u32", sT1, sT1, sW)
        S.op("s_cmp_lg_u32", sT1, 0)
        S.begin_role("s_cbranch_scc1", lab, reads=SCC.regs())
        S.op("v_add_f32", sv[0], float(OPT.perturb), sv[0])
        S.end_role(lab)
    yb = v(64, 4)
    for q in range(4):
        S.op("v_cvt_pk_bf16_f32", yb[q], sv[2 * q], sv[2 * q + 1])
    S.op("v_permlane32_swap_b32", yb[0], yb[2])
    S.op("v_permlane32_swap_b32", yb[1], yb[3])
    S.buf_store("buffer_store_dwordx4", yb, v(3), SOUT, 0, tag="out")
    S.label("L_FIN")
    if OPT.stamps:
        S.wait_all()
        stamp(S, 14)
        stamp_flush(S)


def build():
    G = Gen()
    S = G.S
    prologue(G)
    S.op("s_cmp_eq_u32", sTy, 0)
    S.raw("s_cbranch_scc0 L_TYPEB", reads=SCC.regs())
    S.align8()
    lines_all = []
    l0, st0 = finalize(S, align8=OPT.align8)
    out = {}
    for ty in (0, 1):
        G2 = Gen()
        G2.nlabel = 1000 * (ty + 1)
        G2.dumps = list(G.dumps)
        prologue(G2)
        G2.S.op("s_cmp_eq_u32", sTy, 0)
        G2.S.raw("s_cbranch_scc0 L_TYPEB", reads=SCC.regs())
        G2.S.align8()
        G2.S.label("L_SPLIT")
        phase1(G2, ty == 0)
        if OPT.stop_after is None:
            G2.S.wait_all()
        l, st = finalize(G2.S, align8=OPT.align8)
        k = l.index("L_SPLIT:")
        out[ty] = (l[k + 1:], st, G2.dumps)
    G3 = Gen()
    G3.nlabel = 5000
    G3.dumps = list(out[0][2])
    if OPT.stop_after is None:
        phase2(G3)
    l3, st3 = finalize(G3.S, align8=OPT.align8)
    body = l0 + out[0][0] + ["    s_branch L_PH2", ".p2align 3", "L_TYPEB:"] + out[1][0] + \
        [".p2align 3", "L_PH2:"] + l3 + ["L_END:", "    s_endpgm"]
    info = {"prologue": st0, "A": out[0][1], "B": out[1][1], "p2": st3,
            "dumpsA": out[0][2], "dumpsB": out[1][2], "dumps2": G3.dumps}
    return body, info


HEADER = """; Kernarg layout for this problem (88 bytes, ptrs only, base s[0:1]):
; @launch grid=(256,1,1) block=(512,1,1) lds=163840
"""


def full_text(body):
    k = KNAME + "_kernel"
    t = HEADER
    t += '.amdgcn_target "amdgcn-amd-amdhsa--gfx950"\n.text\n'
    t += f".globl {k}\n.p2align 8\n.type {k},@function\n{k}:\n"
    t += "\n".join(body) + "\n"
    t += f""".section .rodata,"a"
.p2align 6
.amdhsa_kernel {k}
  .amdhsa_next_free_vgpr 256
  .amdhsa_next_free_sgpr 102
  .amdhsa_accum_offset 144
  .amdhsa_group_segment_fixed_size 0
  .amdhsa_kernarg_size 88
  .amdhsa_user_sgpr_count 2
  .amdhsa_user_sgpr_kernarg_segment_ptr 1
  .amdhsa_system_sgpr_workgroup_id_x 1
  .amdhsa_float_denorm_mode_32 3
  .amdhsa_float_denorm_mode_16_64 3
.end_amdhsa_kernel
"""
    return t


if __name__ == "__main__":
    import argparse, json
    ap = argparse.ArgumentParser()
    ap.add_argument("-o", default="out.s")
    ap.add_argument("--debug", action="store_true")
    ap.add_argument("--stop", default=None)
    ap.add_argument("--noalign", action="store_true")
    ap.add_argument("--stamps", action="store_true")
    ap.add_argument("--lnfast", action="store_true")
    ap.add_argument("--perturb", type=float, default=0.0)
    ap.add_argument("--nopround", action="store_true")
    args = ap.parse_args()
    OPT.debug = args.debug
    OPT.stop_after = args.stop
    OPT.align8 = not args.noalign
    OPT.stamps = args.stamps
    OPT.lnfast = args.lnfast
    OPT.perturb = args.perturb
    OPT.nopround = args.nopround
    body, info = build()
    open(args.o, "w").write(full_text(body))
    json.dump({k: info[k] for k in ("dumpsA", "dumpsB", "dumps2")}, open(args.o + ".json", "w"))
    for k in ("prologue", "A", "B", "p2"):
        print(k, info[k])
```

```python
import re


class Reg:
    __slots__ = ("k", "i", "n")

    def __init__(self, k, i, n=1):
        self.k, self.i, self.n = k, i, n

    def __str__(self):
        if self.k in ("vcc", "m0", "exec", "scc"):
            return self.k
        if self.n == 1:
            return f"{self.k}{self.i}"
        return f"{self.k}[{self.i}:{self.i + self.n - 1}]"

    __repr__ = __str__

    def regs(self):
        if self.k in ("m0", "scc"):
            return [(self.k, 0)]
        if self.k in ("vcc", "exec"):
            return [(self.k, 0), (self.k, 1)]
        return [(self.k, self.i + j) for j in range(self.n)]

    def __getitem__(self, idx):
        if isinstance(idx, slice):
            start = idx.start or 0
            stop = idx.stop if idx.stop is not None else self.n
            assert 0 <= start < stop <= self.n, (self, idx)
            return Reg(self.k, self.i + start, stop - start)
        assert 0 <= idx < self.n, (self, idx)
        return Reg(self.k, self.i + idx, 1)


def v(i, n=1):
    return Reg("v", i, n)


def a(i, n=1):
    return Reg("a", i, n)


def s(i, n=1):
    return Reg("s", i, n)


VCC = Reg("vcc", 0, 2)
M0 = Reg("m0", 0, 1)
EXEC = Reg("exec", 0, 2)
SCC = Reg("scc", 0, 1)

TRANS = ("v_exp_f32", "v_log_f32", "v_rcp_f32", "v_rsq_f32", "v_sqrt_f32", "v_sin_f32", "v_cos_f32")
RMW = ("v_fmac_f32", "v_dot2c_f32_bf16", "v_fmac_f32_e64")
VOP3_ONLY = ("v_fma_f32", "v_max3_f32", "v_min3_f32", "v_cvt_pk_bf16_f32", "v_dot2_f32_bf16", "v_perm_b32",
             "v_lshl_add_u32", "v_add3_u32", "v_mad_u32_u24", "v_mul_lo_u32", "v_and_or_b32", "v_lshl_or_b32",
             "v_bfe_u32", "v_pk_mul_f32", "v_pk_add_f32", "v_pk_fma_f32", "v_accvgpr_read_b32",
             "v_accvgpr_write_b32", "v_add_lshl_u32", "v_xad_u32", "v_med3_f32", "v_bfi_b32", "v_mul_hi_u32",
             "v_alignbit_b32")


def is_literal(x):
    if isinstance(x, Reg):
        return False
    if isinstance(x, float):
        return x not in (0.0, 0.5, 1.0, 2.0, 4.0, -0.5, -1.0, -2.0, -4.0)
    if isinstance(x, int):
        return not (-16 <= x <= 64)
    if isinstance(x, str):
        return False
    raise ValueError(x)


def fmt(x):
    if isinstance(x, Reg):
        return str(x)
    if isinstance(x, float):
        if is_literal(x):
            import struct
            return "0x%08x" % struct.unpack("<I", struct.pack("<f", x))[0]
        return repr(x)
    if isinstance(x, int):
        if is_literal(x):
            return "0x%x" % (x & 0xFFFFFFFF)
        return str(x)
    return str(x)


class Neg:
    def __init__(self, r):
        self.r = r

    def __str__(self):
        return "-" + str(self.r)


class Ins:
    __slots__ = ("op", "text", "kind", "reads", "writes", "size", "tag", "meta")

    def __init__(self, op, text, kind, reads, writes, size, tag=None, meta=None):
        self.op, self.text, self.kind = op, text, kind
        self.reads, self.writes, self.size = reads, writes, size
        self.tag, self.meta = tag, meta or {}

    def __repr__(self):
        return self.text


def _regs(ops):
    out = []
    for o in ops:
        if isinstance(o, Neg):
            o = o.r
        if isinstance(o, Reg):
            out += o.regs()
    return out


class Stream:
    def __init__(self):
        self.ins = []

    def add(self, i):
        self.ins.append(i)
        return i

    def extend(self, other):
        self.ins.extend(other.ins if isinstance(other, Stream) else other)

    def __len__(self):
        return len(self.ins)

    def op(self, op, *ops, mods=""):
        txt_ops = ", ".join((str(o) if isinstance(o, Neg) else fmt(o)) for o in ops)
        text = f"{op} {txt_ops}" + (f" {mods}" if mods else "")
        lit = any(is_literal(o) for o in ops if not isinstance(o, Neg))
        if op.startswith("s_"):
            kind = "salu"
            if op.startswith("s_cmp") or op.startswith("s_bitcmp"):
                reads, writes = _regs(ops), SCC.regs()
            else:
                reads, writes = _regs(ops[1:]), _regs(ops[:1])
                if op in ("s_cselect_b32", "s_cselect_b64", "s_addc_u32", "s_subb_u32"):
                    reads += SCC.regs()
                if op in ("s_add_u32", "s_sub_u32", "s_addc_u32", "s_and_b32", "s_or_b32", "s_lshl_b32",
                          "s_lshr_b32", "s_xor_b32", "s_and_b64", "s_or_b64", "s_lshr_b64", "s_bfe_u32",
                          "s_add_i32", "s_min_u32", "s_max_u32", "s_andn2_b64", "s_subb_u32", "s_lshl_b64",
                          "s_bcnt1_i32_b64", "s_and_saveexec_b64", "s_xor_b64", "s_sub_i32"):
                    writes += SCC.regs()
                if op == "s_and_saveexec_b64":
                    reads += EXEC.regs()
                    writes += EXEC.regs()
            size = 8 if lit else 4
            return self.add(Ins(op, text, kind, reads, writes, size))
        base = op.replace("_e64", "").replace("_e32", "").replace("_dpp", "").replace("_sdwa", "")
        kind = "valu"
        if base in TRANS:
            kind = "trans"
        if base.startswith("v_dot2"):
            kind = "dot"
        reads, writes = _regs(ops[1:]), _regs(ops[:1])
        if base in RMW:
            reads += _regs(ops[:1])
        if base == "v_permlane32_swap_b32":
            reads = _regs(ops)
            writes = _regs(ops)
            kind = "permlane"
        if base == "v_cndmask_b32" and len(ops) == 3:
            reads += VCC.regs()
        if base in ("v_readfirstlane_b32", "v_readlane_b32"):
            kind = "readlane"
        meta = {}
        if op.endswith("_dpp"):
            meta["dpp"] = True
        has_sgpr_src = sum(1 for o in ops[1:] if (isinstance(o, Reg) and o.k == "s"))
        size = 4
        if base in VOP3_ONLY or op.endswith("_e64") or op.endswith("_dpp") or op.endswith("_sdwa") or lit:
            size = 8
        if any(isinstance(o, Neg) for o in ops):
            size = 8
        if base.startswith("v_cmp") and not (isinstance(ops[0], Reg) and ops[0].k == "vcc"):
            size = 8
        if size == 4 and len(ops) == 3 and not base.startswith("v_cmp") and kind in ("valu", "dot"):
            if not (isinstance(ops[2], Reg) and ops[2].k == "v"):
                size = 8
        if base in VOP3_ONLY:
            assert not lit, text
        return self.add(Ins(op, text, kind, reads, writes, size, meta=meta))

    def mfma(self, d, A, B, C, shape="32x32x16"):
        op = {"32x32x16": "v_mfma_f32_32x32x16_bf16", "16x16x32": "v_mfma_f32_16x16x32_bf16"}[shape]
        passes = {"32x32x16": 8, "16x16x32": 4}[shape]
        text = f"{op} {d}, {A}, {B}, {fmt(C)}"
        reads = _regs([A, B, C])
        return self.add(Ins(op, text, "mfma", reads, _regs([d]), 8,
                            meta={"passes": passes, "A": _regs([A]), "B": _regs([B]), "C": _regs([C]),
                                  "Cexact": (C.k, C.i, C.n) if isinstance(C, Reg) else None,
                                  "D": (d.k, d.i, d.n)}))

    def ds_read(self, op, d, addr, offset=0, tag=None, mods=""):
        assert 0 <= offset < 65536, offset
        text = f"{op} {d}, {addr}" + (f" offset:{offset}" if offset else "") + (f" {mods}" if mods else "")
        return self.add(Ins(op, text, "ds_read", _regs([addr]), _regs([d]), 8, tag=tag))

    def ds_read2st64(self, d, addr, o0, o1, tag=None):
        text = f"ds_read2st64_b32 {d}, {addr} offset0:{o0} offset1:{o1}"
        return self.add(Ins("ds_read2st64_b32", text, "ds_read", _regs([addr]), _regs([d]), 8, tag=tag))

    def ds_write(self, op, addr, data, offset=0, tag=None):
        assert 0 <= offset < 65536, offset
        text = f"{op} {addr}, {data}" + (f" offset:{offset}" if offset else "")
        return self.add(Ins(op, text, "ds_write", _regs([addr, data]), [], 8, tag=tag))

    def buf_load(self, op, d, voff, srd, soff=0, offset=0, mods="", tag=None):
        assert 0 <= offset < 4096, offset
        vo = f"{voff}" if voff is not None else "off"
        text = f"{op} {d}, {vo}, {srd}, {fmt(soff)}" + (" offen" if voff is not None else "") + \
               (f" offset:{offset}" if offset else "") + (f" {mods}" if mods else "")
        rd = _regs([srd, soff] + ([voff] if voff is not None else []))
        meta = {}
        if op.endswith("d16_hi") or op.endswith("d16"):
            rd += _regs([d])
        return self.add(Ins(op, text, "vm_load", rd, _regs([d]), 8, tag=tag, meta=meta))

    def dma(self, voff, srd, soff=0, offset=0, mods="", tag=None, op="buffer_load_dwordx4"):
        assert 0 <= offset < 4096, offset
        text = f"{op} {voff}, {srd}, {fmt(soff)} offen" + (f" offset:{offset}" if offset else "") + \
               (f" {mods}" if mods else "") + " lds"
        return self.add(Ins(op, text, "dma", _regs([voff, srd, soff, M0]), [], 8, tag=tag))

    def buf_store(self, op, data, voff, srd, soff=0, offset=0, mods="", tag=None):
        assert 0 <= offset < 4096, offset
        text = f"{op} {data}, {voff}, {srd}, {fmt(soff)} offen" + (f" offset:{offset}" if offset else "") + \
               (f" {mods}" if mods else "")
        wide = data.n >= 3
        return self.add(Ins(op, text, "vm_store", _regs([data, voff, srd, soff]), [], 8, tag=tag,
                            meta={"wide": wide, "data": _regs([data])}))

    def raw(self, text, size=4, kind="ctrl", reads=(), writes=()):
        return self.add(Ins(text.split()[0], text, kind, list(reads), list(writes), size))

    def label(self, name):
        return self.add(Ins("label", name + ":", "label", [], [], 0))

    def align8(self):
        return self.add(Ins("align", "", "align", [], [], 0))

    def comment(self, t):
        return self.add(Ins("comment", "; " + t, "comment", [], [], 0))

    def barrier(self):
        return self.add(Ins("s_barrier", "s_barrier", "barrier", [], [], 4))

    def wait_vm_tag(self, *tags):
        return self.add(Ins("waittag", "", "waittag", [], [], 0, meta={"vm": set(tags)}))

    def wait_lgkm_tag(self, *tags):
        return self.add(Ins("waittag", "", "waittag", [], [], 0, meta={"lgkm": set(tags)}))

    def wait_all(self, vm=True, lgkm=True):
        return self.add(Ins("waitall", "", "waitall", [], [], 0, meta={"vm": vm, "lgkm": lgkm}))

    def nop(self, n=1):
        while n > 0:
            k = min(n, 16)
            self.add(Ins("s_nop", f"s_nop {k - 1}", "nop", [], [], 4, meta={"states": k}))
            n -= k

    def begin_role(self, brtext, label, reads=(), key=None):
        self.add(Ins("role_begin", f"{brtext} {label}", "role_begin", list(reads), [], 4,
                     meta={"label": label, "key": key}))

    def end_role(self, label):
        self.add(Ins("role_end", label + ":", "role_end", [], [], 0, meta={"label": label}))

    def push_state(self):
        self.add(Ins("push", "", "push", [], [], 0))

    def pop_state(self):
        self.add(Ins("pop", "", "pop", [], [], 0))

    def mark_vm(self, name):
        self.add(Ins("mark", "", "mark", [], [], 0, meta={"name": name}))

    def wait_vm_since(self, name):
        self.add(Ins("waitmark", "", "waitmark", [], [], 0, meta={"name": name}))

    def fence(self, vm=True, lgkm=False):
        self.add(Ins("fence", "", "fence", [], [], 0, meta={"vm": vm, "lgkm": lgkm}))


VALU_KINDS = ("valu", "trans", "dot", "permlane", "readlane")


class State:
    def __init__(self):
        self.vmq = []
        self.lgq = []
        self.nvm = 0
        self.marks = {}

    def clone(self):
        c = State()
        c.vmq = list(self.vmq)
        c.lgq = list(self.lgq)
        c.nvm = self.nvm
        c.marks = dict(self.marks)
        return c


def finalize(stream, align8=True, verbose=False):
    out = []
    st = State()
    role_stack = []
    haz_stack = []
    key_stack = []
    side_stack = []
    pos = 0
    lastw = {}
    lastC = {}
    laststore = {}
    stats = {"nop_states": 0, "waits": 0}

    def emit(i):
        nonlocal pos
        out.append(i)
        if i.kind == "nop":
            pos += i.meta["states"]
        elif i.kind in ("label", "comment", "role_end"):
            pass
        else:
            pos += 1

    alts = {}

    def sync_alts(vm_n, lg_n):
        if role_stack:
            return
        for a_ in alts.values():
            if vm_n is not None and len(a_.vmq) > vm_n:
                a_.vmq = a_.vmq[len(a_.vmq) - vm_n:] if vm_n else []
            if lg_n is not None and len(a_.lgq) > lg_n:
                a_.lgq = a_.lgq[len(a_.lgq) - lg_n:] if lg_n else []

    def need_wait(vm_n, lg_n):
        sync_alts(None if vm_n is None else min(vm_n, 63), None if lg_n is None else min(lg_n, 15))
        parts = []
        if vm_n is not None:
            parts.append(f"vmcnt({min(vm_n, 63)})")
        if lg_n is not None:
            parts.append(f"lgkmcnt({min(lg_n, 15)})")
        if parts:
            emit(Ins("s_waitcnt", "s_waitcnt " + " ".join(parts), "wait", [], [], 4))
            stats["waits"] += 1

    def queue_wait(q, pred):
        k = -1
        for idx, e in enumerate(q):
            if pred(e):
                k = idx
        if k < 0:
            return None
        n = len(q) - 1 - k
        del q[:k + 1]
        return n

    for ins in stream.ins:
        kind = ins.kind
        if kind == "waittag":
            vm_n = lg_n = None
            if "vm" in ins.meta:
                vm_n = queue_wait(st.vmq, lambda e: e["tag"] in ins.meta["vm"])
            if "lgkm" in ins.meta:
                lg_n = queue_wait(st.lgq, lambda e: e["tag"] in ins.meta["lgkm"])
            need_wait(vm_n, lg_n)
            continue
        if kind == "waitall":
            vm_n = lg_n = None
            if ins.meta["vm"]:
                vm_n = 0
                st.vmq = []
            if ins.meta["lgkm"]:
                lg_n = 0
                st.lgq = []
            need_wait(vm_n, lg_n)
            continue
        if kind == "fence":
            if ins.meta["vm"]:
                st.vmq = []
            if ins.meta["lgkm"]:
                st.lgq = []
            sync_alts(0 if ins.meta["vm"] else None, 0 if ins.meta["lgkm"] else None)
            continue
        if kind == "push":
            side_stack.append((st.clone(), {k: x.clone() for k, x in alts.items()}, pos,
                               {k: list(x) for k, x in lastw.items()}, {k: list(x) for k, x in lastC.items()},
                               {k: list(x) for k, x in laststore.items()}))
            continue
        if kind == "pop":
            st, sa, pos_, lw, lc, ls = side_stack.pop()
            alts.clear()
            alts.update(sa)
            L = pos - pos_
            for cur, snap in ((lastw, lw), (lastC, lc), (laststore, ls)):
                cur.clear()
                for r, ents in snap.items():
                    cur[r] = [((e[0] + L,) + tuple(e[1:])) for e in ents]
            continue
        if kind == "mark":
            st.marks[ins.meta["name"]] = st.nvm
            continue
        if kind == "waitmark":
            n = st.nvm - st.marks[ins.meta["name"]]
            if n < 63:
                need_wait(n, None)
                keep = min(n, len(st.vmq))
                st.vmq = st.vmq[len(st.vmq) - keep:] if keep else []
            continue
        if kind == "role_begin":
            emit(ins)
            role_stack.append(st.clone())
            key = ins.meta.get("key")
            key_stack.append(key)
            if key is not None:
                assert len(role_stack) == 1, "keyed roles cannot be nested in other roles"
                if key not in alts:
                    alts[key] = st.clone()
                st = alts[key]
            haz_stack.append((pos, {k: list(x) for k, x in lastw.items()}, {k: list(x) for k, x in lastC.items()},
                              {k: list(x) for k, x in laststore.items()}))
            continue
        if kind == "role_end":
            saved = role_stack.pop()
            key = key_stack.pop()
            marks = st.marks
            if key is not None:
                alts[key] = st
            for e in st.vmq + st.lgq:
                if key is None and e.get("inrole") == len(role_stack) + 1 and e["writes"]:
                    raise RuntimeError(f"role block {ins.meta['label']} leaves a register load in flight: {e}")
            st = saved
            for k_, v_ in marks.items():
                st.marks.setdefault(k_, min(v_, st.nvm))
            emit(ins)
            pos0, sw, sc, ss = haz_stack.pop()
            L = pos - pos0
            for cur, snap in ((lastw, sw), (lastC, sc), (laststore, ss)):
                for r, ents in snap.items():
                    shifted = [((e[0] + L,) + tuple(e[1:])) for e in ents if pos0 - e[0] < 24]
                    keep = [e for e in cur.get(r, []) if e[0] > pos0]
                    cur[r] = keep + shifted
            continue
        if kind in ("label", "comment"):
            emit(ins)
            continue
        if kind == "align":
            out.append(ins)
            continue

        rd, wr = set(ins.reads), set(ins.writes)
        touch = rd | wr
        vm_n = queue_wait(st.vmq, lambda e: e["writes"] & touch)
        lg_n = queue_wait(st.lgq, lambda e: e["writes"] & touch)
        need_wait(vm_n, lg_n)

        need = 0

        def req(prev_pos, states):
            nonlocal need
            gap = pos - prev_pos - 1
            if gap < states:
                need = max(need, states - gap)

        is_valu = kind in VALU_KINDS
        for r, w in [(r, w) for r in rd for w in lastw.get(r, [])]:
            wpos, wkind, wmeta = w
            if wkind == "mfma":
                table = {8: (0, 10, 12, 12), 4: (0, 6, 8, 8)}[wmeta["passes"]]
                if kind == "mfma":
                    if r in ins.meta["C"] and r not in ins.meta["A"] and r not in ins.meta["B"]:
                        if ins.meta["Cexact"] == wmeta["D"] and ins.meta["passes"] == wmeta["passes"]:
                            req(wpos, table[0])
                        else:
                            req(wpos, table[1])
                    else:
                        req(wpos, table[2])
                else:
                    req(wpos, table[3])
            elif wkind in VALU_KINDS:
                if r[0] in ("v", "a"):
                    if kind == "mfma":
                        req(wpos, 2)
                    if ins.meta.get("dpp"):
                        req(wpos, 2)
                    if kind == "permlane":
                        req(wpos, 2)
                    if kind == "readlane":
                        req(wpos, 1)
                    if wkind == "trans" and is_valu and kind != "trans":
                        req(wpos, 1)
                    if wkind == "trans" and kind == "trans":
                        req(wpos, 1)
                    if wkind == "dot":
                        same = (wmeta.get("op") == ins.op)
                        if same and ins.op in RMW and r in wr:
                            pass
                        else:
                            req(wpos, 3)
                else:
                    if is_valu:
                        req(wpos, 2)
                    if kind in ("vm_load", "vm_store", "dma"):
                        req(wpos, 5)
                    if kind == "readlane":
                        req(wpos, 4)
            elif wkind == "salu":
                if r == ("m0", 0) and kind == "dma":
                    req(wpos, 1)
        for r in wr:
            for w in lastw.get(r, []):
                wpos, wkind, wmeta = w
                if wkind == "mfma" and kind != "mfma":
                    req(wpos, {8: 12, 4: 8}[wmeta["passes"]])
                if wkind == "mfma" and kind == "mfma":
                    if not (ins.meta["Cexact"] == wmeta["D"]):
                        req(wpos, {8: 10, 4: 6}[wmeta["passes"]])
                if wkind == "dot" and not (wmeta.get("op") == ins.op and ins.op in RMW):
                    req(wpos, 3)
            for c in lastC.get(r, []):
                if kind != "mfma":
                    req(c[0], {8: 7, 4: 3}[c[1]])
            for sp in laststore.get(r, []):
                req(sp[0], 2 if is_valu else 1)
        if need:
            stats["nop_states"] += need
            n = need
            while n > 0:
                k = min(n, 16)
                emit(Ins("s_nop", f"s_nop {k - 1}", "nop", [], [], 4, meta={"states": k}))
                n -= k

        mypos = pos
        emit(ins)
        for r in wr:
            meta = dict(ins.meta)
            meta["op"] = ins.op
            lastw[r] = [(mypos, kind, meta)]
        if kind == "mfma":
            for r in ins.meta["C"]:
                lastC[r] = [(mypos, ins.meta["passes"])]
        if kind == "vm_store" and ins.meta.get("wide"):
            for r in ins.meta["data"]:
                laststore[r] = [(mypos,)]
        inrole = len(role_stack) if role_stack else None
        if not role_stack:
            for a_ in alts.values():
                for e in a_.vmq + a_.lgq:
                    if e.get("inrole") and e["writes"] & (rd | wr):
                        raise RuntimeError(f"common code touches {e['writes'] & (rd | wr)} while a keyed role loads it: {ins.text}")
                if kind in ("vm_load", "dma", "vm_store"):
                    a_.vmq.append({"writes": wr if kind == "vm_load" else set(), "tag": ins.tag, "inrole": None})
                    a_.nvm += 1
                if kind in ("ds_read", "ds_write"):
                    a_.lgq.append({"writes": wr, "tag": ins.tag, "inrole": None})
        if kind in ("vm_load", "dma", "vm_store"):
            st.vmq.append({"writes": wr if kind == "vm_load" else set(), "tag": ins.tag, "inrole": inrole})
            if not role_stack:
                st.nvm += 1
            else:
                st.nvm += 1
            assert len(st.vmq) <= 63 or True
        if kind in ("ds_read", "ds_write"):
            st.lgq.append({"writes": wr, "tag": ins.tag, "inrole": inrole})

    lines = []
    fix_sizes(out)
    if align8:
        off = 0
        res = []
        for idx, i in enumerate(out):
            if i.kind == "align":
                if off % 8 == 4:
                    res.append(Ins("s_nop", "s_nop 0", "nop", [], [], 4, meta={"states": 1}))
                    off += 4
                continue
            if i.size == 8 and off % 8 == 4:
                done = False
                j = len(res) - 1
                while j >= 0 and res[j].size in (0, 4):
                    p = res[j]
                    if p.size == 4 and p.kind in ("valu", "trans") and promotable(p):
                        parts = p.text.split(" ", 1)
                        res[j] = Ins(p.op + "_e64", parts[0] + "_e64 " + parts[1], p.kind, p.reads, p.writes, 8,
                                     meta=p.meta)
                        done = True
                        break
                    if p.kind in ("label", "role_end", "role_begin"):
                        break
                    j -= 1
                if not done:
                    res.append(Ins("s_nop", "s_nop 0", "nop", [], [], 4, meta={"states": 1}))
                    stats["align_nops"] = stats.get("align_nops", 0) + 1
                off += 4
            res.append(i)
            off += i.size
        out = res
    for i in out:
        if i.text:
            lines.append(i.text if i.kind in ("label", "role_end") else "    " + i.text)
    stats["bytes"] = sum(i.size for i in out)
    stats["n"] = sum(1 for i in out if i.size)
    return lines, stats


def promotable(p):
    t = p.text
    op = p.op
    if op.endswith(("_e64", "_dpp", "_sdwa")):
        return False
    if op in ("v_readfirstlane_b32", "v_nop", "v_dot2c_f32_bf16", "v_permlane32_swap_b32"):
        return False
    if op.startswith("v_cmp"):
        return False
    if op in ("v_cndmask_b32", "v_fmac_f32"):
        return False
    return True


def interleave(main, fillers, every=1, per=None, start=0):
    out = []
    f = list(fillers)
    fi = 0
    nm = sum(1 for i in main if i.kind == "mfma")
    left = nm
    seen = 0
    for i in main:
        out.append(i)
        if i.kind == "mfma":
            seen += 1
            if seen > start:
                remaining = len(f) - fi
                k = per if per is not None else -(-remaining // max(left, 1))
                for _ in range(min(k, remaining)):
                    out.append(f[fi])
                    fi += 1
            left -= 1
    out.extend(f[fi:])
    return out


_size_cache = {}


def fix_sizes(inss):
    import subprocess
    todo = []
    for i in inss:
        if i.kind in ("label", "comment", "role_end", "align") or not i.text:
            continue
        t = i.text
        if i.kind == "role_begin" or t.startswith(("s_cbranch", "s_branch")):
            i.size = 4
            continue
        if t not in _size_cache:
            todo.append(t)
    todo = list(dict.fromkeys(todo))
    if todo:
        src = "\n".join(todo) + "\n"
        r = subprocess.run(["llvm-mc", "-triple=amdgcn-amd-amdhsa", "-mcpu=gfx950", "-show-encoding"],
                           input=src, capture_output=True, text=True)
        if r.returncode != 0:
            print(r.stderr[:3000])
            raise SystemExit("llvm-mc failed")
        encs = [l for l in r.stdout.splitlines() if "encoding:" in l]
        assert len(encs) == len(todo), (len(encs), len(todo))
        for t, l in zip(todo, encs):
            _size_cache[t] = l.split("encoding:")[1].count("0x")
    for i in inss:
        if i.kind in ("label", "comment", "role_end") or not i.text:
            continue
        if i.kind == "role_begin" or i.text.startswith(("s_cbranch", "s_branch")):
            continue
        i.size = _size_cache[i.text]
```

```python
import sys, os, struct
from asmgen import *

KNAME = "recurrent_scan__linear_kernel_hedgehog__glu_gated_swiglu__prompt"


class Opt:
    debug = False
    align8 = False
    stamps = False
    prefetch_code = True
    mergeB = False
    nf = 4
    hstamps = False
    sleep = 2
    kvmode = 'atomic'
OPT = Opt()

WS_H = 0
WS_O = 0x700000
WS_KV = 0x900000
WS_ST = 0x920000
WS_FL = 0x930000
WS_STAMP = 0x0A00000
WS_DUMP = 0x1000000
WS_SIZE = 268435456

sWG = s(2)
SX, SQKV, SW1, SW3 = s(28, 4), s(32, 4), s(36, 4), s(40, 4)
SW2, SWO, SPHI, SOUT = s(44, 4), s(48, 4), s(52, 4), s(56, 4)
SWS, SDBG = s(60, 4), s(64, 4)
SWH = s(4, 4)
sW, sTg, sCh, sR, sM, sTy = s(68), s(69), s(70), s(71), s(72), s(73)
sCk = [s(74 + i) for i in range(7)]
sHi, sIL, sC3, sOnes = s(81), s(82), s(83), s(84)
sW2o, sWoo = s(85), s(86)
sWK = s(87)
sLineA, sLineB = s(88), s(89)
sHst = s(90)
sStat = s(91)
sT0, sT1, sT2, sT3 = s(92), s(93), s(94), s(95)
sP2 = s(96)
sTb, sCb = s(97), s(98)
sWt2 = s(99)
sSpin = s(100)
sIdx = s(101)
sHld, sOld, sPoll = s(10), s(11), s(12)
sFl = s(16)
sDmp = s(18)
sC = s(26)

def U(k):
    return 8192 * k
STG = [U(0), U(2)]
AUX = U(4)
PHI_IMG = U(0)
V_IMG = U(4)
LDS_BYTES = 163840

class _Named(Reg):
    def __init__(self, name):
        Reg.__init__(self, "exec", 0, 2)
        self.name = name

    def __str__(self):
        return self.name
EXEC_LO, EXEC_HI = _Named("exec_lo"), _Named("exec_hi")

vL = v(1)
vL16 = v(2)
vStW = v(3)
vStR = [v(4), v(5), v(6), v(7)]
vQ = v(8)
vDq = v(9)
vDw = v(9)
vD1, vD3 = v(10), v(11)
vF = [v(12), v(13)]
vDh, vFh = v(14), v(15)
vMask, vM01 = v(16), v(17)
vKvOff = v(18)
vL4 = v(19)
vT0, vT1, vT2, vT3 = v(20), v(21), v(22), v(23)
XRAW = 24
POOL = 80
P = POOL

LOG2E = 1.4426950408889634


def X(sig, i):
    return v(XRAW + 28 * sig + 4 * i, 4)


def xn(step):
    return a(4 * step, 4)


class Gen:
    def __init__(self, base):
        self.S = Stream()
        self.nlabel = base
        self.dumps = []

    def lab(self, name):
        self.nlabel += 1
        return f"L_{name}_{self.nlabel}"


class Gap:
    def __init__(self, n):
        self.n = n


def singles(stream):
    return [[i] for i in stream.ins]


def singles_stream(ins):
    return [[i] for i in ins]


def gcost(g):
    if isinstance(g, Gap):
        return g.n
    c = 0
    for i in g:
        if i.kind == "trans":
            c += 2
        elif i.kind in ("salu", "nop", "waittag", "waitall", "mark", "waitmark", "comment", "label", "role_begin",
                        "role_end", "fence"):
            c += 0.25
        elif i.kind in ("dma", "vm_load", "vm_store"):
            c += 3
        elif i.kind == "mfma":
            c += 2.5
        else:
            c += 1
    return c


def spread(main, extra):
    if not extra:
        return list(main)
    if not main:
        return list(extra)
    out = []
    tot = sum(gcost(g) for g in main)
    acc = 0.0
    k = 0
    n = len(extra)
    for g in main:
        while k < n and acc >= tot * (k + 0.5) / n:
            out.append(extra[k])
            k += 1
        out.append(g)
        acc += gcost(g)
    out.extend(extra[k:])
    return out


CH = 0


def place(main, extra):
    extra = [x for x in extra if isinstance(x, Gap) or len(x)]
    if not extra:
        return list(main)
    if not main:
        return list(extra)
    lo, hi = (0.04, 0.46) if CH == 0 else (0.52, 0.94)
    out = []
    tot = sum(gcost(g) for g in main)
    acc = 0.0
    k = 0
    n = len(extra)
    for g in main:
        while k < n and acc >= tot * (lo + (hi - lo) * k / max(n - 1, 1)):
            out.append(extra[k])
            k += 1
        out.append(g)
        acc += gcost(g)
    out.extend(extra[k:])
    return out


def padded(f, n):
    c = sum(gcost(g) for g in f)
    if c >= n:
        return f
    f = list(f)
    while c < n:
        f.append(Gap(1))
        c += 1
    return f


class Queue:
    def __init__(self, groups):
        self.g = list(groups)
        self.total = sum(gcost(x) for x in self.g)

    def take(self, cost):
        out = []
        c = 0.0
        while self.g and c + 0.5 * gcost(self.g[0]) <= cost:
            x = self.g.pop(0)
            c += gcost(x)
            out.append(x)
        return out

    def rest(self):
        out, self.g = self.g, []
        return out

    def left(self):
        return sum(gcost(x) for x in self.g)


def weave(slots, fillers, first=0):
    out = []
    n = len(slots)
    tot = sum(gcost(g) for g in fillers)
    fi = 0
    done = 0.0
    for k, sl in enumerate(slots):
        out.extend(sl)
        if k < first:
            continue
        goal = tot * (k + 1 - first) / max(n - first, 1)
        while fi < len(fillers) and done + 0.5 * gcost(fillers[fi]) <= goal + 1e-9:
            if not isinstance(fillers[fi], Gap):
                out.extend(fillers[fi])
            done += gcost(fillers[fi])
            fi += 1
    while fi < len(fillers):
        if not isinstance(fillers[fi], Gap):
            out.extend(fillers[fi])
        fi += 1
    return out


def emit_groups(S, groups):
    for g in groups:
        if not isinstance(g, Gap):
            S.extend(g)


def dma_group(voff, srd, soff_ins, soff, lds_addr_const, tag, wave_term=sWK, mods=""):
    S = Stream()
    for fn in soff_ins:
        fn(S)
    if wave_term is None:
        S.op("s_mov_b32", M0, lds_addr_const)
    elif lds_addr_const == 0:
        S.op("s_mov_b32", M0, wave_term)
    else:
        S.op("s_add_u32", M0, wave_term, lds_addr_const)
    if not soff_ins:
        S.nop(1)
    else:
        last = S.ins[-2]
        if last.op in ("s_mul_i32", "s_add_u32") and SCC.regs()[0] not in last.reads:
            S.ins[-2], S.ins[-1] = S.ins[-1], S.ins[-2]
    S.dma(voff, srd, soff, tag=tag, mods=mods)
    return S.ins


def dump(G, S, name, regs):
    if not OPT.debug:
        return
    base = WS_DUMP + sum(d[1] * 256 * 8 * 256 for d in G.dumps)
    n = len(regs)
    G.dumps.append((name, n, base))
    S.op("s_lshl_b32", sDmp, sWG, 3)
    S.op("s_add_u32", sDmp, sDmp, sW)
    S.op("s_mul_i32", sDmp, sDmp, n * 256)
    S.op("s_add_u32", sDmp, sDmp, base)
    for k, r in enumerate(regs):
        S.buf_store("buffer_store_dword", r, vL4, SWS, sDmp, tag="dump")
        S.op("s_add_u32", sDmp, sDmp, 256)
    S.wait_vm_tag("dump")


HMAP = {3: 3, 4: 4, 5: 5, 6: 6, 7: 7, 8: 8, 9: 9, 10: 10, 11: 11, 14: 2}


def hstamp(S, k, neg=False):
    S.raw("s_memrealtime s[20:21]", size=8, kind="smem")
    S.raw("s_waitcnt lgkmcnt(0)", kind="wait")
    S.fence(vm=False, lgkm=True)
    if neg:
        S.op("s_not_b32", s(20), s(20))
    S.op("v_mov_b32", v(0), s(20))
    S.op("s_mov_b32", s(21), 4 * k)
    S.op("s_mov_b64", EXEC, 1)
    S.add(Ins("buffer_atomic_umax", f"buffer_atomic_umax v0, off, {SDBG}, s21", "vm_store",
              [("v", 0), ("s", 21)] + SDBG.regs(), [], 8, tag="hs", meta={"wide": False, "data": []}))
    S.op("s_mov_b64", EXEC, -1)


def stamp(S, k, cyc=False):
    if OPT.hstamps and not cyc and k in HMAP:
        hstamp(S, HMAP[k])
    if not OPT.stamps:
        return
    S.raw(("s_memtime" if cyc else "s_memrealtime") + " s[20:21]", size=8, kind="smem")
    S.raw("s_waitcnt lgkmcnt(0)", kind="wait")
    S.fence(vm=False, lgkm=True)
    S.raw(f"v_writelane_b32 v0, s20, {k}", size=8, kind="valu", writes=[("v", 0)])


def cstamp(S, k):
    stamp(S, k, True)


def stamp_flush(S):
    if not OPT.stamps:
        return
    S.op("s_lshl_b32", sT1, sWG, 3)
    S.op("s_add_u32", sT1, sT1, sW)
    S.op("s_lshl_b32", sT1, sT1, 8)
    S.op("s_add_u32", sT1, sT1, WS_STAMP)
    S.nop(2)
    S.buf_store("buffer_store_dword", v(0), vL4, SWS, sT1, tag="stamp")
    S.wait_vm_tag("stamp")


def reglist(r):
    return [r[i] for i in range(r.n)]


def srd(S, d, ptr, nbytes):
    S.op("s_mov_b32", d[0], ptr[0])
    S.op("s_mov_b32", d[1], ptr[1])
    S.op("s_mov_b32", d[2], nbytes)
    S.op("s_mov_b32", d[3], 0x20000)


vPhiAddr = v(P + 63)
vPhiA = v(P + 52, 8)


def prologue(G, code_bytes):
    S = G.S
    S.op("s_cmp_ge_u32", sWG, 256)
    S.raw("s_cbranch_scc1 L_END", reads=SCC.regs())
    if OPT.stamps or OPT.hstamps:
        S.raw("s_memrealtime s[26:27]", size=8, kind="smem")
    S.raw("s_load_dwordx16 s[4:19], s[0:1], 0", size=8, kind="smem")
    S.raw("s_load_dwordx4 s[20:23], s[0:1], 64", size=8, kind="smem")
    S.raw("s_load_dwordx2 s[24:25], s[0:1], 80", size=8, kind="smem")
    S.op("v_and_b32", vL, 63, v(0))
    S.op("v_lshrrev_b32", vT0, 6, v(0))
    S.op("v_lshlrev_b32", vL16, 4, vL)
    S.op("v_readfirstlane_b32", sW, vT0)
    S.op("v_lshlrev_b32", vL4, 2, vL)
    S.op("s_and_b32", sT0, sWG, 7)
    S.op("s_lshr_b32", sIdx, sWG, 3)
    S.op("s_lshr_b32", sT1, sT0, 2)
    S.op("s_lshl_b32", sT1, sT1, 3)
    S.op("s_lshr_b32", sT2, sIdx, 2)
    S.op("s_add_u32", sR, sT1, sT2)
    S.op("s_cmp_eq_u32", sT2, 7)
    S.op("s_cselect_b32", sT2, 0, sT2)
    for i in range(7):
        S.op("s_add_u32", sCk[i], sT2, i)
        S.op("s_cmp_ge_u32", sCk[i], 7)
        S.op("s_cselect_b32", sT1, 7, 0)
        S.op("s_sub_u32", sCk[i], sCk[i], sT1)
    vX0, vX1 = v(P + 10), v(P + 11)
    S.op("s_lshl_b32", sT1, sR, 7)
    S.op("s_lshl_b32", sT2, sW, 4)
    S.op("s_add_u32", sT1, sT1, sT2)
    S.op("v_lshrrev_b32", vT0, 3, vL)
    S.op("v_add_u32", vT1, sT1, vT0)
    S.op("v_mul_u32_u24", vT1, 896, vT1)
    S.op("v_and_b32", vT2, 7, vL)
    S.op("v_lshl_add_u32", vX0, vT2, 4, vT1)
    S.op("v_add_u32", vX1, 7168, vX0)
    R = Stream()
    rest_scalars(R, sT0)
    lane_patterns(R)
    D = Stream()
    srd(D, SQKV, s(6, 2), 448 * 2688)
    srd(D, SPHI, s(8, 2), 16 * 1568)
    srd(D, SWS, s(24, 2), WS_SIZE)
    srd(D, SW1, s(14, 2), 448 * 3584)
    srd(D, SW3, s(16, 2), 448 * 3584)
    srd(D, SWO, s(10, 2), 448 * 896)
    srd(D, SW2, s(18, 2), 1792 * 896)
    srd(D, SOUT, s(20, 2), 2048 * 896)
    srd(D, SDBG, s(22, 2), 256)
    D.op("s_cmp_eq_u32", sP2, 0)
    D.op("s_cselect_b32", SW2[2], 0, SW2[2])
    D.op("s_cselect_b32", SWO[2], 0, SWO[2])
    pre = 40
    S.extend(R.ins[:pre])
    rest = R.ins[pre:] + D.ins
    S.raw("s_waitcnt lgkmcnt(0)", kind="wait")
    if OPT.stamps:
        S.raw("v_writelane_b32 v0, s26, 0", size=8, kind="valu", writes=[("v", 0)])
    srd(S, SX, s(4, 2), 2048 * 896)
    per = -(-len(rest) // 14)
    k = 0
    for i in range(7):
        for sg in range(2):
            if sg == 0:
                S.op("s_lshl_b32", s(27), sCk[i], 7)
            S.buf_load("buffer_load_dwordx4", X(sg, i), vX0 if sg == 0 else vX1, SX, s(27), tag="x")
            S.extend(rest[k:k + per])
            k += per
    S.extend(rest[k:])
    if OPT.hstamps:
        S.op("s_not_b32", s(26), s(26))
        S.op("v_mov_b32", v(0), s(26))
        S.op("s_mov_b32", s(21), 4)
        S.op("s_mov_b64", EXEC, 1)
        S.add(Ins("buffer_atomic_umax", f"buffer_atomic_umax v0, off, {SDBG}, s21", "vm_store",
                  [("v", 0), ("s", 21)] + SDBG.regs(), [], 8, tag="hs", meta={"wide": False, "data": []}))
        S.op("s_mov_b64", EXEC, -1)
    if OPT.prefetch_code:
        S.raw("s_getpc_b64 s[4:5]", kind="salu", writes=[("s", 4), ("s", 5)])
        S.raw("L_PC:", size=0, kind="label")
        S.op("s_mov_b32", s(6), code_bytes)
        S.op("s_mov_b32", s(7), 0x20000)
        S.op("s_lshl_b32", sT1, sW, 13)
        S.op("v_lshlrev_b32", vT0, 7, vL)
        S.op("v_add_u32", vT0, sT1, vT0)
        S.buf_load("buffer_load_dword", v(P + 62), vT0, s(4, 4), 0, tag="code")
        S.op("s_mov_b32", sT1, 65536)
        S.buf_load("buffer_load_dword", v(P + 61), vT0, s(4, 4), sT1, tag="code")
    stamp(S, 1)


def rest_scalars(S, sc):
    S.op("s_and_b32", sT1, sc, 3)
    S.op("s_lshl_b32", sT1, sT1, 1)
    S.op("s_bfe_u32", sT3, sIdx, 0x10001)
    S.op("s_add_u32", sM, sT1, sT3)
    S.op("s_and_b32", sTy, sIdx, 1)
    S.op("s_and_b32", sTg, sW, 3)
    S.op("s_lshr_b32", sCh, sW, 2)
    S.op("s_lshl_b32", sWK, sW, 10)
    S.op("s_mul_i32", sT1, sIdx, 37)
    S.op("s_lshr_b32", sT1, sT1, 8)
    S.op("s_mul_i32", sT2, sT1, 7)
    S.op("s_sub_u32", sCb, sIdx, sT2)
    S.op("s_lshl_b32", sT2, sc, 2)
    S.op("s_add_u32", sTb, sT2, sT1)
    S.op("s_cmp_lt_u32", sIdx, 28)
    S.op("s_cselect_b32", sP2, 1, 0)
    S.op("s_mov_b32", sOnes, 0x3F803F80)
    S.op("s_mov_b32", sHi, 0xFFFF0000)
    S.op("s_mov_b32", sIL, -1.0 / LOG2E)
    S.op("s_mov_b32", sC3, -LOG2E ** 3)
    S.op("s_lshl_b32", sT1, sR, 3)
    S.op("s_add_u32", sT1, sT1, sM)
    S.op("s_lshl_b32", sT1, sT1, 1)
    S.op("s_add_u32", sT1, sT1, sTy)
    S.op("s_lshl_b32", sT1, sT1, 7)
    S.op("s_add_u32", sStat, sT1, WS_ST)
    S.op("s_lshl_b32", sT1, sR, 2)
    S.op("s_add_u32", sT1, sT1, sTg)
    S.op("s_mul_i32", sHst, sT1, 112 * 1024)
    S.op("s_mul_i32", sT1, sM, 448)
    S.op("s_and_b32", sT2, sM, 1)
    S.op("s_lshl_b32", sT3, sTy, 1)
    S.op("s_add_u32", sT2, sT2, sT3)
    tabA = [256, 64, 0, 192]
    tabB = [384, 0, 128, 320]
    for dst, tab in ((sLineA, tabA), (sLineB, tabB)):
        S.op("s_mov_b32", dst, tab[0])
        for k in (1, 2, 3):
            S.op("s_cmp_eq_u32", sT2, k)
            S.op("s_cselect_b32", dst, tab[k], dst)
        S.op("s_add_u32", dst, dst, sT1)
    S.op("s_mul_i32", sW2o, sTg, 448 * 896)
    S.op("s_mul_i32", sWoo, sTg, 112 * 896)
    S.op("s_lshl_b32", sT1, sTg, 11)
    S.op("s_lshl_b32", sT2, sCh, 10)
    S.op("s_add_u32", sWt2, sT1, sT2)


def lane_patterns(S):
    t0, t1, t2, t3 = vT0, vT1, vT2, vT3
    row, pos, hf, rr, cc, g0 = [v(P + i) for i in range(6)]
    S.op("v_lshrrev_b32", row, 3, vL)
    S.op("v_and_b32", pos, 7, vL)
    S.op("v_lshrrev_b32", hf, 5, vL)
    S.op("v_bfe_u32", rr, vL, 2, 2)
    S.op("v_and_b32", cc, 3, vL)
    S.op("v_bfe_u32", g0, vL, 4, 1)
    S.op("s_lshr_b32", sT1, sW, 1)
    S.op("s_lshl_b32", sT1, sT1, 12)
    S.op("s_and_b32", sT2, sW, 1)
    S.op("s_lshl_b32", sT2, sT2, 8)
    S.op("s_add_u32", sT1, sT1, sT2)
    S.op("v_xor_b32", t0, row, pos)
    S.op("v_lshlrev_b32", t0, 4, t0)
    S.op("v_and_b32", t1, 1, pos)
    S.op("v_lshl_add_u32", t0, t1, 9, t0)
    S.op("v_lshrrev_b32", t1, 1, pos)
    S.op("v_lshl_add_u32", t0, t1, 10, t0)
    S.op("v_add_u32", vStW, sT1, t0)
    S.op("s_lshl_b32", sT1, sTg, 12)
    S.op("v_xor_b32", t0, hf, vL)
    S.op("v_lshlrev_b32", t0, 4, t0)
    S.op("v_add_u32", vStR[0], sT1, t0)
    for k in range(1, 4):
        S.op("v_xor_b32", t1, 32 * k, t0)
        S.op("v_add_u32", t1, sT1, t1)
        S.op("v_add_u32", vStR[k], 1024 * k, t1)
    r16, sw = v(P + 6), v(P + 7)
    S.op("v_lshl_add_u32", r16, hf, 3, rr)
    S.op("v_lshrrev_b32", sw, 1, rr)
    S.op("v_xor_b32", t0, sCh, sw)
    S.op("v_lshlrev_b32", t0, 6, t0)
    S.op("v_lshl_add_u32", t0, r16, 7, t0)
    S.op("v_lshl_add_u32", t0, g0, 5, t0)
    S.op("v_lshl_add_u32", vQ, cc, 3, t0)
    S.op("v_lshl_or_b32", t1, g0, 1, sw)
    S.op("s_lshl_b32", sT1, sCh, 1)
    S.op("v_xor_b32", t0, sT1, t1)
    S.op("v_lshlrev_b32", t0, 5, t0)
    S.op("v_lshl_add_u32", t0, r16, 7, t0)
    S.op("v_lshl_add_u32", t0, g0, 13, t0)
    S.op("v_lshl_add_u32", vF[0], cc, 3, t0)
    S.op("v_xor_b32", vF[1], 32, vF[0])
    S.op("v_xor_b32", t0, sCh, g0)
    S.op("v_lshlrev_b32", t0, 5, t0)
    S.op("v_lshl_add_u32", t0, r16, 6, t0)
    S.op("v_lshl_add_u32", t0, g0, 12, t0)
    S.op("v_lshl_add_u32", vFh, cc, 3, t0)
    rsw = v(P + 8)
    S.op("v_bfe_u32", rsw, row, 1, 1)
    S.op("s_lshl_b32", sT1, sW, 3)
    S.op("v_add_u32", t0, sT1, row)
    S.op("v_mul_u32_u24", t2, 2688, t0)
    S.op("v_bfe_u32", t1, vL, 2, 1)
    S.op("v_xor_b32", t1, t1, rsw)
    S.op("v_mul_u32_u24", t1, 56, t1)
    S.op("v_add_u32", t2, t2, t1)
    S.op("v_lshl_add_u32", t2, cc, 4, t2)
    S.op("s_mul_i32", sT2, sM, 112)
    S.op("v_add_u32", vDq, sT2, t2)
    S.op("v_mul_u32_u24", t2, 3584, t0)
    S.op("v_lshlrev_b32", t1, 1, rsw)
    S.op("v_xor_b32", t1, t1, pos)
    S.op("v_lshl_add_u32", vD1, t1, 4, t2)
    S.op("v_xor_b32", vD3, 64, vD1)
    S.op("s_lshl_b32", sT1, sTg, 4)
    S.op("v_lshrrev_b32", t0, 2, vL)
    S.op("v_add_u32", t0, sT1, t0)
    S.op("v_mul_u32_u24", t0, 3584, t0)
    S.op("s_lshl_b32", sT1, sCh, 1)
    S.op("v_xor_b32", t1, sT1, cc)
    S.op("v_lshl_add_u32", vDh, t1, 4, t0)
    S.op("v_add_u32", vMask, -1, hf)
    S.op("v_and_b32", vM01, 1.0, vMask)
    S.op("v_lshl_or_b32", t0, g0, 2, cc)
    S.op("v_min_u32", t0, 6, t0)
    S.op("v_lshlrev_b32", t0, 3, t0)
    S.op("v_lshl_add_u32", t1, hf, 2, rr)
    S.op("v_mul_u32_u24", t1, 56, t1)
    S.op("v_add_u32", t0, t0, t1)
    S.op("s_mul_i32", sT1, sCh, 1568)
    S.op("s_add_u32", sT1, sT1, AUX)
    S.op("v_add_u32", vPhiAddr, sT1, t0)


def w2_pattern():
    S = Stream()
    t0, t1, t2 = vT0, vT1, v(18)
    S.op("v_lshrrev_b32", t0, 3, vL)
    S.op("v_bfe_u32", t1, t0, 1, 1)
    S.op("v_lshlrev_b32", t1, 2, t1)
    S.op("v_and_b32", t2, 7, vL)
    S.op("v_xor_b32", t1, t1, t2)
    S.op("s_lshl_b32", sT1, sCh, 3)
    S.op("v_add_u32", t0, sT1, t0)
    S.op("v_mul_u32_u24", t0, 896, t0)
    S.op("v_lshl_add_u32", t0, t1, 4, t0)
    S.op("s_lshl_b32", sT1, sCb, 7)
    S.op("v_add_u32", vDw, sT1, t0)
    return S.ins


def g_qkv(i, matoff, lds, tag):
    return dma_group(vDq, SQKV,
                     [lambda S: S.op("s_mul_i32", sT0, sCk[i], 64 * 2688)] +
                     ([lambda S: S.op("s_add_u32", sT0, sT0, matoff)] if matoff else []),
                     sT0, lds, tag)


def g_line(i, sLine, lds, tag):
    f = [lambda S: S.op("s_mul_i32", sT0, sCk[i], 64 * 3584), lambda S: S.op("s_add_u32", sT0, sT0, sLine)]
    return [dma_group(vD1, SW1, f, sT0, lds, tag), dma_group(vD3, SW3, f, sT0, lds + 8192, tag)]


def g_half(i, sLine, lds, tag):
    return dma_group(vDh, SWH, [lambda S: S.op("s_mul_i32", sT0, sCk[i], 64 * 3584),
                                lambda S: S.op("s_add_u32", sT0, sT0, sLine)], sT0, lds, tag)


STAGE1 = [8, 9, 10, 11, 0, 1, 2, 3, 16, 17, 18, 19, 20, 21, 22, 23]
STAGE2 = [12, 13, 4, 5, 6, 7, 14, 15, 24, 25, 26, 27]
ORDER = STAGE1 + STAGE2


def g_step(n, unit):
    if n < 28:
        return dma_group(vDw, SW2, [lambda S: S.op("s_add_u32", sT0, sW2o, ORDER[n] * 16 * 896)], sT0,
                         U(unit), f"W{n}", wave_term=sWt2)
    hh, k = (n - 28) >> 1, (n - 28) & 1
    return dma_group(vDw, SWO, [lambda S: S.op("s_add_u32", sT0, sWoo, (28 * hh + 16 * k) * 896)], sT0,
                     U(unit), f"W{n}", wave_term=sWt2)


vSum = [v(P + 48), v(P + 49)]
vSq = [v(P + 50), v(P + 51)]
vNegm = vSum
vRstd = vSq
LNT = [v(P + 40 + i) for i in range(8)]


def ln_stats(S, extra):
    St = Stream()
    for i in range(7):
        for q in range(4):
            for sg in range(2):
                St.op("v_dot2c_f32_bf16", vSum[sg], sOnes, X(sg, i)[q])
                St.op("v_dot2c_f32_bf16", vSq[sg], X(sg, i)[q], X(sg, i)[q])
    for sg in range(2):
        S.op("v_mov_b32", vSum[sg], 0)
        S.op("v_mov_b32", vSq[sg], 0)
    emit_groups(S, spread(singles(St), extra))
    for mods in ("quad_perm:[1,0,3,2] row_mask:0xf bank_mask:0xf", "quad_perm:[2,3,0,1] row_mask:0xf bank_mask:0xf",
                 "row_half_mirror row_mask:0xf bank_mask:0xf"):
        for r in (vSum[0], vSq[0], vSum[1], vSq[1]):
            S.op("v_add_f32_dpp", r, r, r, mods=mods)
    for sg in range(2):
        S.op("v_mul_f32", vSum[sg], -1.0 / 448, vSum[sg])
        S.op("v_mul_f32", vSq[sg], 1.0 / 448, vSq[sg])
    for sg in range(2):
        S.op("v_fma_f32", vSq[sg], Neg(vSum[sg]), vSum[sg], vSq[sg])
    for sg in range(2):
        S.op("v_max_f32", vSq[sg], 0, vSq[sg])
    for sg in range(2):
        S.op("v_add_f32", vSq[sg], 1e-5, vSq[sg])
    for sg in range(2):
        S.op("v_rsq_f32", vRstd[sg], vSq[sg])
    S.nop(1)
    for sg in range(2):
        S.op("v_mul_f32", vRstd[sg], -LOG2E, vRstd[sg])
    for sg in range(2):
        S.op("v_mul_f32", vNegm[sg], vNegm[sg], vRstd[sg])


def ln_norm(i):
    S = Stream()
    t = LNT
    for sg in range(2):
        Pq = X(sg, i)
        for q in range(4):
            S.op("v_lshlrev_b32", t[2 * q], 16, Pq[q])
            S.op("v_and_b32", t[2 * q + 1], sHi, Pq[q])
        for q in range(8):
            S.op("v_fma_f32", t[q], t[q], vRstd[sg], vNegm[sg])
        for q in range(4):
            S.op("v_cvt_pk_bf16_f32", Pq[q], t[2 * q], t[2 * q + 1])
        S.ds_write("ds_write_b128", vStW, Pq, offset=STG[i & 1] + 128 * sg, tag="stg")
    return S


class Tile:
    def __init__(self, acc, pat, tmps, slot, extra, kstride, rd2):
        self.acc, self.pat, self.tmps, self.slot = acc, pat, tmps, slot
        self.extra, self.kstride, self.rd2 = extra, kstride, rd2


def frag_reads(S, dst, tile, chunk, kappa, state):
    key = (tile.pat.i, tile.tmps[0].i, chunk)
    addr = tile.tmps[chunk & 1]
    if key not in state["addr"]:
        state["addr"].add(key)
        S.op("v_add_u32", addr, tile.slot(chunk), tile.pat)
    off = tile.extra + kappa * tile.kstride
    S.ds_read("ds_read_b64_tr_b16", dst[0:2], addr, offset=off)
    S.ds_read("ds_read_b64_tr_b16", dst[2:4], addr, offset=off + tile.rd2)


def pass_slots(tiles, ring, chunk, lookahead, visible, state):
    nt = len(tiles)
    allseq = state["seq"]
    slots = []
    for k in range(4):
        for t in range(nt):
            j = state["m"]
            S = Stream()
            while state["r"] <= min(j + lookahead, len(allseq) - 1) and visible(allseq[state["r"]][0]):
                cc_, kk, tt = allseq[state["r"]]
                frag_reads(S, ring[state["r"] % len(ring)], tiles[tt], cc_, kk, state)
                state["r"] += 1
            assert state["r"] > j, "fragment not read yet"
            tile = tiles[t]
            C = 0 if (chunk == 0 and k == 0) else tile.acc
            S.mfma(tile.acc, ring[j % len(ring)], xn(4 * chunk + k), C)
            state["m"] += 1
            slots.append(S.ins)
    return slots


def new_pass_state(tiles):
    nt = len(tiles)
    return {"seq": [(c, k, t) for c in range(7) for k in range(4) for t in range(nt)], "m": 0, "r": 0, "addr": set()}


def features(acc, kb, p, sc, phi, wA, between):
    S = Stream()
    for q in range(8):
        S.op("v_cvt_pk_bf16_f32", kb[q], acc[2 * q], acc[2 * q + 1])
    S.mfma(p, wA[0:4], kb[0:4], 0)
    S.mfma(p, wA[4:8], kb[4:8], p)
    head = singles(S)
    S = Stream()
    mx, mn, t0, t1, sp, sm, ip2, im2 = [sc[i] for i in range(8)]
    S.op("v_max3_f32", mx, p[0], p[1], p[2])
    S.op("v_min3_f32", mn, p[0], p[1], p[2])
    for j in range(3, 15, 2):
        S.op("v_max3_f32", mx, mx, p[j], p[j + 1])
        S.op("v_min3_f32", mn, mn, p[j], p[j + 1])
    S.op("v_max_f32", mx, mx, p[15])
    S.op("v_min_f32", mn, mn, p[15])
    S.op("v_mov_b32", t0, mx)
    S.op("v_mov_b32", t1, mn)
    S.nop(1)
    S.op("v_permlane32_swap_b32", mx, t0)
    S.op("v_permlane32_swap_b32", mn, t1)
    S.op("v_max_f32", mx, mx, t0)
    S.op("v_min_f32", mn, mn, t1)
    E = acc
    for j0 in range(0, 16, 4):
        for j in range(j0, j0 + 4):
            S.op("v_sub_f32", E[j], mn, p[j])
            S.op("v_sub_f32", p[j], p[j], mx)
        for j in range(j0, j0 + 4):
            S.op("v_exp_f32", E[j], E[j])
            S.op("v_exp_f32", p[j], p[j])
    S.op("v_add_f32", sp, E[12], E[13])
    S.op("v_add_f32", sm, p[12], p[13])
    S.op("v_add_f32", t0, E[14], E[15])
    S.op("v_add_f32", t1, p[14], p[15])
    S.op("v_add_f32", sp, sp, t0)
    S.op("v_add_f32", sm, sm, t1)
    S.op("v_add_f32", t0, E[1], E[2])
    S.op("v_add_f32", t1, p[1], p[2])
    S.op("v_fma_f32", sp, sp, vM01, E[0])
    S.op("v_fma_f32", sm, sm, vM01, p[0])
    for j in range(3, 12, 2):
        if j + 1 < 12:
            S.op("v_add_f32", t0, t0, E[j + 1])
            S.op("v_add_f32", t1, t1, p[j + 1])
        S.op("v_add_f32", sp, sp, E[j])
        S.op("v_add_f32", sm, sm, p[j])
    S.op("v_add_f32", sp, sp, t0)
    S.op("v_add_f32", sm, sm, t1)
    S.op("v_mov_b32", t0, sp)
    S.op("v_mov_b32", t1, sm)
    S.nop(1)
    S.op("v_permlane32_swap_b32", sp, t0)
    S.op("v_permlane32_swap_b32", sm, t1)
    S.op("v_add_f32", sp, sp, t0)
    S.op("v_add_f32", sm, sm, t1)
    S.op("v_rcp_f32", sp, sp)
    S.op("v_rcp_f32", sm, sm)
    S.nop(1)
    S.op("v_mul_f32", ip2, sp, vM01)
    S.op("v_mul_f32", im2, sm, vM01)
    for j in range(16):
        S.op("v_mul_f32", E[j], E[j], sp if j < 12 else ip2)
        S.op("v_mul_f32", p[j], p[j], sm if j < 12 else im2)
    for q in range(8):
        S.op("v_cvt_pk_bf16_f32", phi[q], E[2 * q], E[2 * q + 1])
    for q in range(8):
        S.op("v_cvt_pk_bf16_f32", phi[8 + q], p[2 * q], p[2 * q + 1])
    return head + between + singles(S)


def silu_tile(acc, tmp, hb, ustore):
    S = Stream()
    for j in range(8):
        S.op("v_exp_f32", tmp[j], acc[j])
    for j in range(8):
        S.op("v_mul_f32", acc[j], acc[j], acc[8 + j])
    for j in range(8):
        S.op("v_add_f32", tmp[j], 1.0, tmp[j])
    for j in range(8):
        S.op("v_rcp_f32", tmp[j], tmp[j])
    for j in range(8):
        S.op("v_mul_f32", acc[j], acc[j], tmp[j])
    for q in range(4):
        S.op("v_cvt_pk_bf16_f32", hb[q], acc[2 * q], acc[2 * q + 1])
    g = singles(S)
    St = Stream()
    ustore(St, hb)
    g.append(St.ins)
    return g


def h_store(sLine, mul, add, tag):
    def f(S, hb):
        S.op("s_lshl_b32", sT1, sLine, 5)
        S.op("s_add_u32", sT1, sT1, sHst)
        S.op("s_mul_i32", sT2, sCh, mul * 1024)
        S.op("s_add_u32", sT1, sT1, sT2)
        S.buf_store("buffer_store_dwordx4", hb, vL16, SWS, sT1, offset=add * 1024, mods="sc1", tag=tag)
    return f


def one_lane(S, fn):
    S.op("s_mov_b64", EXEC, 1)
    fn(S)
    S.op("s_mov_b64", EXEC, -1)


def lane0_store(S, value, soff_fn, srd_, op="buffer_store_dword", mods="sc1", tag="flag"):
    S.op("v_mov_b32", vT0, value)
    S.op("v_mov_b32", vT1, 0)
    soff_fn(S)
    one_lane(S, lambda S: S.buf_store(op, vT0, vT1, srd_, sT1, mods=mods, tag=tag))


def w0_begin(G, S, name):
    lab = G.lab(name)
    S.op("s_cmp_lg_u32", sW, 0)
    S.begin_role("s_cbranch_scc1", lab, reads=SCC.regs(), key="w0")
    return lab


def signal(G, stage):
    S = Stream()
    if CH == 1:
        return S.ins
    lab = w0_begin(G, S, "sig")
    lane0_store(S, 1, lambda S: S.op("s_add_u32", sT1, sFl, 128 * stage), SWS)
    S.end_role(lab)
    return S.ins


def fpoll_issue(G, voff, soff, tmp, srd_=None):
    S = Stream()
    if CH == 1:
        return S.ins
    lab = w0_begin(G, S, "pi")
    S.buf_load("buffer_load_dword", tmp, voff, srd_ or SWS, soff, mods="sc1", tag="poll")
    S.end_role(lab)
    return S.ins


def fpoll_check(G, S, voff, soff, tmp, need, mask=None, srd_=None):
    srd_ = srd_ or SWS
    if CH == 1:
        return
    outer = w0_begin(G, S, "pc")
    lab = G.lab("poll")
    done = lab + "_done"

    def test(S):
        S.op("v_cmp_le_u32", VCC, need, tmp)
        S.nop(1)
        if mask is None:
            S.raw("s_cmp_eq_u64 vcc, -1", kind="salu", reads=VCC.regs(), writes=SCC.regs())
        else:
            S.raw(f"s_and_b32 s{sT1.i}, vcc_lo, 0x{mask:x}", size=8, kind="salu", reads=VCC.regs(),
                  writes=sT1.regs() + SCC.regs())
            S.op("s_cmp_eq_u32", sT1, mask)
    test(S)
    S.begin_role("s_cbranch_scc1", done, reads=SCC.regs())
    S.op("s_mov_b32", sSpin, 100000)
    S.label(lab)
    S.raw(f"s_sleep {OPT.sleep}", kind="ctrl")
    S.buf_load("buffer_load_dword", tmp, voff, srd_, soff, mods="sc1")
    S.raw("s_waitcnt vmcnt(0)", kind="wait")
    S.fence(vm=True)
    test(S)
    S.raw(f"s_cbranch_scc1 {done}", reads=SCC.regs())
    S.op("s_sub_u32", sSpin, sSpin, 1)
    S.op("s_cmp_lg_u32", sSpin, 0)
    S.raw(f"s_cbranch_scc1 {lab}", reads=SCC.regs())
    S.end_role(done)
    S.end_role(outer)


def poll_check(G, S, voff, srd_, soff, cmp_op, cmp_val, mask, tmp):
    lab = G.lab("poll")
    done = lab + "_done"

    def test(S):
        S.op(cmp_op, VCC, cmp_val, tmp)
        S.nop(1)
        if mask is None:
            S.raw("s_cmp_eq_u64 vcc, -1", kind="salu", reads=VCC.regs(), writes=SCC.regs())
        else:
            S.raw(f"s_and_b32 s{sT1.i}, vcc_lo, 0x{mask:x}", size=8, kind="salu", reads=VCC.regs(),
                  writes=sT1.regs() + SCC.regs())
            S.op("s_cmp_eq_u32", sT1, mask)
    test(S)
    S.begin_role("s_cbranch_scc1", done, reads=SCC.regs())
    S.op("s_mov_b32", sSpin, 100000)
    S.label(lab)
    S.raw("s_sleep 1", kind="ctrl")
    S.buf_load("buffer_load_dword", tmp, voff, srd_, soff, mods="sc1")
    S.raw("s_waitcnt vmcnt(0)", kind="wait")
    S.fence(vm=True)
    test(S)
    S.raw(f"s_cbranch_scc1 {done}", reads=SCC.regs())
    S.op("s_sub_u32", sSpin, sSpin, 1)
    S.op("s_cmp_lg_u32", sSpin, 0)
    S.raw(f"s_cbranch_scc1 {lab}", reads=SCC.regs())
    S.end_role(done)


def zero_init(G, typeA):
    S = Stream()
    if CH == 1:
        return S.ins
    lab = w0_begin(G, S, "zero")
    z = v(P + 12, 4)
    for j in range(4):
        S.op("v_mov_b32", z[j], 0)
    S.op("s_mov_b32", EXEC_LO, -1)
    S.op("s_mov_b32", EXEC_HI, 0)
    S.buf_store("buffer_store_dwordx4", z, vL16, SWS, sFl, mods="sc1", tag="zero")
    S.op("s_mov_b64", EXEC, -1)
    if typeA and OPT.kvmode.startswith("atomic"):
        S.op("v_lshrrev_b32", vT0, 5, vL)
        S.op("v_lshlrev_b32", vT0, 13, vT0)
        S.op("v_and_b32", vT1, 31, vL)
        S.op("v_lshl_add_u32", vT0, vT1, 4, vT0)
        S.op("s_lshl_b32", sT1, sM, 14)
        S.op("s_lshl_b32", sT2, sR, 9)
        S.op("s_add_u32", sT1, sT1, sT2)
        S.op("s_add_u32", sT1, sT1, WS_KV)
        S.buf_store("buffer_store_dwordx4", z, vT0, SWS, sT1, mods="sc1", tag="zero")
    S.end_role(lab)
    return S.ins


def zero_signal(G):
    S = Stream()
    if CH == 1:
        return S.ins
    lab = w0_begin(G, S, "zsig")
    S.wait_vm_tag("zero")

    def off(S):
        S.op("s_and_b32", sT1, sWG, 3)
        S.op("s_lshl_b32", sT1, sT1, 6)
    lane0_store(S, 1, off, SDBG, op="buffer_atomic_add", mods="", tag="zat")
    S.end_role(lab)
    return S.ins


vZpoll = v(P + 62)
vZoff = v(P + 61)


def phase1(G, typeA):
    S = G.S
    if typeA:
        slot = lambda j: U(6 + 2 * j)
        accK, accV = v(P, 16), v(P + 16, 16)
        tilesP1 = [Tile(accK, vQ, [vT2, vT3], slot, 0, 2048, 512),
                   Tile(accV, vQ, [vT2, vT3], slot, 8192, 2048, 512)]
        wgrp = lambda j: [g_qkv(j, 896, slot(j), f"w{j}"), g_qkv(j, 1792, slot(j) + 8192, f"w{j}")]
    else:
        qslot = lambda j: U(6 + j)
        p2slot = {0: U(13), 1: U(15), 2: U(17), 3: U(6), 4: U(8), 5: U(10), 6: U(2)}
        accQ = v(P, 16)
        tilesP1 = [Tile(accQ, vQ, [vT2, vT3], qslot, 0, 2048, 512)]
        wgrp = lambda j: [g_qkv(j, 0, qslot(j), f"w{j}")]
    ringP1 = [v(P + 32, 4), v(P + 36, 4), X(0, 0), X(1, 0)]
    E = Stream()
    E.op("s_and_b32", sT1, sW, 3)
    E.op("s_lshl_b32", s(27), sT1, 10)
    E.op("v_add_u32", vT2, s(27), vL16)
    E.op("s_mul_i32", sT0, sM, 2 * 1568)
    E.extend(dma_group(vT2, SPHI, [], sT0, AUX, "phi", wave_term=s(27)))
    extra = wgrp(0) + [E.ins, counter_addrs(), zero_init(G, typeA)] + wgrp(1)
    if typeA:
        H = Stream()
        H.op("s_cmp_eq_u32", sCh, 0)
        for k in range(3):
            H.op("s_cselect_b32", SWH[k], SW1[k], SW3[k])
        H.op("s_mov_b32", SWH[3], 0x20000)
        extra.append(H.ins)
    else:
        extra += wgrp(2)
    stamp(S, 2)
    ln_stats(S, extra)
    stamp(S, 3)
    S.extend(ln_norm(0))
    dump(G, S, "stats", [vNegm[0], vRstd[0], vNegm[1], vRstd[1]])
    S.wait_lgkm_tag("stg")
    S.barrier()
    for k in range(4):
        S.ds_read("ds_read_b128", xn(k), vStR[k], offset=STG[0], tag="xr")
    emit_groups(S, place(singles(ln_norm(1)), wgrp(2) if typeA else wgrp(3)))
    S.wait_vm_tag("w0", "w1", "phi")
    S.wait_lgkm_tag("stg", "xr")
    S.barrier()
    stamp(S, 4)
    cstamp(S, 20)
    for k in range(2):
        for rd in range(2):
            S.ds_read("ds_read_b64_tr_b16", vPhiA[4 * k + 2 * rd:4 * k + 2 * rd + 2], vPhiAddr,
                      offset=896 * k + 448 * rd)
    st = new_pass_state(tilesP1)
    for i in range(7):
        slots = pass_slots(tilesP1, ringP1, i, 3, lambda c: c <= i + 1, st)
        xr = Stream()
        if i + 1 < 7:
            for k in range(4):
                xr.ds_read("ds_read_b128", xn(4 * (i + 1) + k), vStR[k], offset=STG[(i + 1) & 1], tag="xr")
        fill = singles(xr) + (singles(ln_norm(i + 2)) if i + 2 < 7 else [])
        dm = []
        if typeA:
            if i + 3 < 7:
                dm += wgrp(i + 3)
            if i >= 4:
                dm += g_line(i - 4, sLineA, slot(i - 4), f"a{i - 4}")
        else:
            if i + 4 < 7:
                dm += wgrp(i + 4)
            adm = {0: [0], 1: [1], 2: [2], 3: [3], 5: [4], 6: [5, 6]}.get(i, [])
            for j in adm:
                dm += g_line(j, sLineA, p2slot[j], f"a{j}")
        if i == 0:
            Z = Stream()
            for q in (6, 7):
                Z.op("v_and_b32", vPhiA[q], vMask, vPhiA[q])
            fill.append(Z.ins)
        if i == 1:
            dm.append(zero_signal(G))
        if i == 5:
            Z = Stream()
            Z.op("v_lshlrev_b32", vZoff, 6, vL)
            Z.extend(fpoll_issue(G, vZoff, 0, vZpoll, SDBG))
            dm.insert(0, Z.ins)
            fill += singles_stream(w2_pattern())
        S.extend(weave(slots, place(padded(fill, 12), dm)))
        if i == 6:
            fpoll_check(G, S, vZoff, 0, vZpoll, 64, 0xF, SDBG)
        if i + 2 < 7:
            S.wait_vm_tag(f"w{i + 2}")
        if i + 1 < 7:
            S.wait_lgkm_tag("stg", "xr")
        if i == 6:
            S.wait_vm_tag("a0", "a1")
        S.barrier()
        cstamp(S, 21 + i)
    if OPT.debug:
        tmp = v(P + 40, 4)
        for stp in (0, 5, 27):
            for q in range(4):
                S.op("v_accvgpr_read_b32", tmp[q], xn(stp)[q])
            dump(G, S, f"xn{stp}", reglist(tmp))
        dump(G, S, "acc0", reglist(v(P, 16)))
        dump(G, S, "acc1", reglist(v(P + 16, 16) if typeA else v(P, 16)))
    stamp(S, 5)
    if typeA:
        return phase1A_rest(G, slot, accK, accV)
    return phase1B_rest(G, p2slot, accQ)


def kv_groups():
    S = Stream()
    D = [v(P, 4), v(P + 4, 4)]
    A = [v(P + 8, 4), v(P + 12, 4)]
    B = [[v(P + 32, 4), v(P + 36, 4)], [v(P + 40, 4), v(P + 44, 4)]]
    aA, aB0, aB1, t0, t1 = v(P + 48), v(P + 49), v(P + 50), v(P + 51), v(P + 60)
    g, rr, cc = v(P + 61), v(P + 62), v(P + 63)
    S.op("v_lshrrev_b32", g, 4, vL)
    S.op("v_bfe_u32", rr, vL, 2, 2)
    S.op("v_and_b32", cc, 3, vL)
    S.op("v_lshl_add_u32", t0, g, 2, rr)
    S.op("s_lshl_b32", sT1, sTg, 2)
    S.op("v_add_u32", t1, sT1, cc)
    S.op("v_xor_b32", t1, t1, t0)
    S.op("v_lshlrev_b32", t1, 3, t1)
    S.op("v_lshl_add_u32", t1, t0, 7, t1)
    S.op("s_lshl_b32", sT2, sCh, 14)
    S.op("v_add_u32", aA, sT2, t1)
    S.op("v_lshrrev_b32", t1, 1, t0)
    S.op("v_xor_b32", t1, t1, cc)
    S.op("v_lshlrev_b32", t1, 3, t1)
    S.op("v_lshl_add_u32", t1, t0, 6, t1)
    S.op("s_lshl_b32", sT2, sCh, 13)
    S.op("s_add_u32", sT2, sT2, V_IMG)
    S.op("v_add_u32", aB0, sT2, t1)
    S.op("v_xor_b32", aB1, 32, aB0)
    groups = singles(S)

    def reads(k):
        R = Stream()
        aa, bb = A[k & 1], B[k & 1]
        R.ds_read("ds_read_b64_tr_b16", aa[0:2], aA, offset=PHI_IMG + 4096 * k)
        R.ds_read("ds_read_b64_tr_b16", aa[2:4], aA, offset=PHI_IMG + 4096 * k + 2048)
        for db, ad in ((0, aB0), (1, aB1)):
            R.ds_read("ds_read_b64_tr_b16", bb[db][0:2], ad, offset=2048 * k)
            R.ds_read("ds_read_b64_tr_b16", bb[db][2:4], ad, offset=2048 * k + 1024)
        return singles(R)

    def mm(k):
        R = Stream()
        for db in range(2):
            R.mfma(D[db], A[k & 1], B[k & 1][db], 0 if k == 0 else D[db], shape="16x16x32")
        return singles(R)
    groups += reads(0) + reads(1) + [Gap(3)] + mm(0) + reads(2) + mm(1) + reads(3) + [Gap(3)] + mm(2) + [Gap(2)] + mm(3)
    groups.append(Gap(4))
    R = Stream()
    R.op("s_lshl_b32", sT1, sM, 1)
    R.op("s_add_u32", sT1, sT1, sCh)
    R.op("s_lshl_b32", sT1, sT1, 13)
    R.op("s_lshl_b32", sT2, sTg, 11)
    R.op("s_add_u32", sT1, sT1, sT2)
    R.op("s_add_u32", sT3, sT1, WS_KV)
    groups.append(R.ins)
    if OPT.kvmode == "store":
        R = Stream()
        R.op("s_lshl_b32", sT1, sR, 17)
        R.op("s_add_u32", sT3, sT3, sT1)
        R.op("s_add_u32", sT3, sT3, 0x1000000 - WS_KV)
        groups.append(R.ins)
        for db in range(2):
            R = Stream()
            R.buf_store("buffer_store_dwordx4", D[db], vL16, SWS, sT3, offset=1024 * db, mods="sc1", tag="kvat")
            groups.append(R.ins)
        return groups
    for db in range(2):
        for j in range(4):
            R = Stream()
            R.buf_store("buffer_atomic_add_f32", D[db][j], vL4, SWS, sT3, offset=1024 * db + 256 * j,
                        mods=("sc1" if OPT.kvmode == "atomic_sc1" else ""), tag="kvat")
            groups.append(R.ins)
    return groups


def counter_addrs():
    S = Stream()
    S.op("s_sub_u32", sT1, sStat, WS_ST)
    S.op("s_lshl_b32", sT1, sT1, 2)
    S.op("s_add_u32", sFl, sT1, WS_FL)
    return S.ins


UNITS_A = [7, 9, 11, 13, 15, 0, 1, 2, 3, 4, 5, 19, 6, 8, 10, 12, 14, 16, 17, 18]
UNITS_B = [4, 5, 2, 3, 13, 14, 15, 16, 17, 18, 6, 7, 8, 9, 10, 11, 0, 1, 12, 19]

vW = [[v(128), v(129)], [v(130), v(131)], [v(140), v(141)]]
vPo, vPv = v(142), v(143)
vXo, vOut = v(3), v(8)
sPoll2 = s(13)


def p2_setup():
    gs = []
    sKq, sU = sTg, sCh
    t0, t1 = vT0, vT1
    S = Stream()
    S.op("s_lshr_b32", sT1, sTb, 1)
    S.op("s_lshl_b32", sT1, sT1, 2)
    S.op("s_and_b32", sT2, sTb, 1)
    S.op("s_lshl_b32", sT2, sT2, 1)
    S.op("s_add_u32", sT1, sT1, sT2)
    S.op("s_add_u32", sT1, sT1, sU)
    S.op("s_mul_i32", sHld, sT1, 112 * 1024)
    S.op("s_mul_i32", sT2, sKq, 28 * 1024)
    S.op("s_add_u32", sHld, sHld, sT2)
    S.op("s_lshl_b32", sOld, sT1, 15)
    S.op("s_lshl_b32", sT2, sKq, 13)
    S.op("s_add_u32", sOld, sOld, sT2)
    S.op("s_add_u32", sOld, sOld, WS_O)
    S.op("s_lshr_b32", sT1, sTb, 1)
    S.op("s_lshl_b32", sT1, sT1, 13)
    S.op("s_add_u32", sPoll2, sT1, WS_FL)
    S.op("v_and_b32", vPo, 15, vL)
    S.op("v_lshlrev_b32", vPo, 9, vPo)
    gs.append(S.ins)
    S = Stream()
    S.op("v_bfe_u32", t0, vL, 2, 2)
    S.op("v_lshrrev_b32", t1, 5, vL)
    S.op("v_lshl_add_u32", t1, t1, 2, t0)
    S.op("v_lshrrev_b32", t0, 1, t0)
    S.op("v_lshlrev_b32", t0, 6, t0)
    S.op("v_lshl_add_u32", t0, t1, 7, t0)
    S.op("v_bfe_u32", t1, vL, 4, 1)
    S.op("v_lshl_add_u32", t0, t1, 5, t0)
    S.op("v_and_b32", t1, 3, vL)
    S.op("v_lshl_add_u32", t0, t1, 3, t0)
    S.op("s_lshl_b32", sT1, sKq, 11)
    S.op("v_add_u32", vW[0][0], sT1, t0)
    gs.append(S.ins)
    S = Stream()
    S.op("v_xor_b32", vW[0][1], 64, vW[0][0])
    for w in (1, 2):
        for c in range(2):
            S.op("v_add_u32", vW[w][c], 65536 * w, vW[0][c])
    gs += singles(S)
    S = Stream()
    S.op("v_and_b32", t0, 31, vL)
    S.op("s_lshl_b32", sT1, sTb, 6)
    S.op("s_lshl_b32", sT2, sU, 5)
    S.op("s_add_u32", sT1, sT1, sT2)
    S.op("v_add_u32", t0, sT1, t0)
    S.op("v_mul_u32_u24", t0, 896, t0)
    S.op("s_lshl_b32", sT1, sCb, 7)
    S.op("s_lshl_b32", sT2, sKq, 5)
    S.op("s_add_u32", sT1, sT1, sT2)
    S.op("v_add_u32", t0, sT1, t0)
    S.op("v_lshrrev_b32", t1, 5, vL)
    S.op("v_lshl_add_u32", vXo, t1, 3, t0)
    S.op("v_lshl_add_u32", vOut, t1, 4, t0)
    gs.append(S.ins)
    return gs


def p2_poll_issue(G, stage):
    S = Stream()
    S.op("s_add_u32", s(14), sPoll2, 128 * stage)
    S.extend(fpoll_issue(G, vPo, s(14), vPv))
    return S.ins


def bfrag(n):
    return a(4 * n, 4) if n < 28 else a(4 * (n - 28), 4)


def bload(n):
    S_ = Stream()
    if n < 28:
        S_.op("s_add_u32", sT0, sHld, ORDER[n] * 1024)
    else:
        S_.op("s_add_u32", sT0, sOld, (n - 28) * 1024)
    S_.buf_load("buffer_load_dwordx4", bfrag(n), vL16, SWS, sT0, mods="sc1", tag=f"h{n}")
    return S_.ins


def copy_ins(g):
    return [Ins(i.op, i.text, i.kind, i.reads, i.writes, i.size, i.tag, dict(i.meta)) for i in g]


def phase1A_rest(G, slot, accK, accV):
    S = G.S
    XR = XRAW
    acc2 = [v(XR, 16), v(XR + 16, 16)]
    ring = [v(XR + 32 + 4 * i, 4) for i in range(4)]
    kb = v(XR + 48, 8)
    p = v(P + 32, 16)
    sc = [v(P + 48), v(P + 49), v(P + 50), v(P + 51), v(P + 60), v(P + 61), v(P + 62), v(P + 63)]
    tiles = [Tile(acc2[e], vF[e], [vStR[2 * e], vStR[2 * e + 1]], slot, 0, 2048, 512) for e in range(2)]
    Fv = Stream()
    Fv.op("v_bfi_b32", accV[12], vMask, accV[12], 1.0)
    vb = accV[0:8]
    for q in range(8):
        Fv.op("v_cvt_pk_bf16_f32", vb[q], accV[2 * q], accV[2 * q + 1])
    Fv.op("v_and_b32", vT0, 31, vL)
    Fv.op("v_bfe_u32", vT1, vL, 1, 3)
    Fv.op("v_lshrrev_b32", vT2, 5, vL)
    Fv.op("v_xor_b32", vT1, vT1, vT2)
    Fv.op("v_lshlrev_b32", vT1, 3, vT1)
    Fv.op("v_lshl_add_u32", vT1, vT0, 6, vT1)
    Fv.op("s_lshl_b32", s(14), sCh, 13)
    Fv.op("s_lshl_b32", s(15), sTg, 11)
    Fv.op("s_add_u32", s(14), s(14), s(15))
    Fv.op("s_add_u32", s(14), s(14), V_IMG)
    Fv.op("v_add_u32", vT1, s(14), vT1)
    for i in range(4):
        if i:
            Fv.op("v_xor_b32", vT3, 16 * i, vT1)
        Fv.ds_write("ds_write_b64", vT3 if i else vT1, vb[2 * i:2 * i + 2], tag="img")
    phi = accV
    Fk = features(accK, kb, p, sc, phi, vPhiA, singles(Fv))
    Fw = Stream()
    Fw.op("v_and_b32", vT0, 31, vL)
    Fw.op("v_and_b32", vT1, 15, vL)
    Fw.op("v_lshrrev_b32", vT2, 5, vL)
    Fw.op("v_xor_b32", vT1, vT1, vT2)
    Fw.op("v_lshlrev_b32", vT1, 3, vT1)
    Fw.op("v_lshl_add_u32", vT1, vT0, 7, vT1)
    Fw.op("s_lshl_b32", s(14), sCh, 14)
    Fw.op("s_lshl_b32", s(15), sTg, 12)
    Fw.op("s_add_u32", s(14), s(14), s(15))
    Fw.op("v_add_u32", vT1, s(14), vT1)
    aw = singles(Fw)
    Fw = Stream()
    for T in range(2):
        for i in range(4):
            if T or i:
                Fw.op("v_xor_b32", vT3, (8 * T + 2 * i) * 8, vT1)
            Fw.ds_write("ds_write_b64", vT3 if (T or i) else vT1, phi[8 * T + 2 * i:8 * T + 2 * i + 2],
                        offset=PHI_IMG, tag="img")
    fq = Queue(Fk[:-16] + aw + Fk[-16:] + singles(Fw))
    if OPT.debug:
        D = Stream()
        dump(G, D, "phi", reglist(phi))
        fq.g.append(D.ins)
    NF = OPT.nf
    kq_ = Queue(kv_groups())
    st = new_pass_state(tiles)
    acc3 = v(P + 16, 16)
    bslot = lambda j: slot(j) if j < 6 else U(17)
    for i in range(7):
        slots = pass_slots(tiles, ring, i, 3, lambda c: c <= i + 1, st)
        if i < NF:
            f = fq.take(fq.total / NF + 1) if i < NF - 1 else fq.rest()
        elif i == NF:
            f = kq_.take(kq_.total * 0.62)
        else:
            f = kq_.rest()
        dm = []
        if i + 3 < 7:
            dm += g_line(i + 3, sLineA, slot(i + 3), f"a{i + 3}")
        if i >= 1:
            dm.append(g_half(i - 1, sLineB, bslot(i - 1), f"b{i - 1}"))
            if i - 1 < 5:
                dm.append(g_step(i - 1, UNITS_A[i - 1]))
        if i == 6:
            dm.append(g_half(6, sLineB, bslot(6), "b6"))
        S.extend(weave(slots, place(padded(f, 12), dm)))
        if i + 2 < 7:
            S.wait_vm_tag(f"a{i + 2}")
        if i == NF - 1:
            S.wait_lgkm_tag("img")
        if i == 6:
            S.wait_vm_tag("b0", "b1", "b2", "b3")
        S.barrier()
        cstamp(S, 28 + i)
    stamp(S, 6)
    if OPT.debug:
        dump(G, S, "acc2", reglist(acc2[0]) + reglist(acc2[1]))
    tiles3 = [Tile(acc3, vFh, [vStR[0], vStR[1]], bslot, 0, 1024, 256)]
    tmp = p[0:8]
    hb = [p[8:12], p[12:16]]
    fq = Queue([Gap(2)] + silu_tile(acc2[0], tmp, hb[0], h_store(sLineA, 2, 0, "h1")) +
               silu_tile(acc2[1], tmp, hb[1], h_store(sLineA, 2, 1, "h1")))
    sq = Queue(p2_setup())
    st = new_pass_state(tiles3)
    steps = [[5, 6], [7, 8], [9, 10], [11], [], [], []]
    for i in range(7):
        slots = pass_slots(tiles3, ring, i, 3, lambda c: c <= (3 if i <= 1 else 6), st)
        f = fq.take(fq.total / 4 + 1) if i < 3 else fq.rest()
        if i >= 4:
            f = f + (sq.take(sq.total / 3 + 2) if i < 6 else sq.rest())
        dm = []
        for n in steps[i]:
            dm.append(g_step(n, UNITS_A[n]))
        if i == 2:
            K_ = Stream()
            stamp(K_, 18)
            K_.extend(signal(G, 0))
            dm.insert(0, K_.ins)
        S.extend(weave(slots, place(padded(f, 8), dm)))
        if i == 1:
            S.wait_vm_tag("b4", "b5", "b6", "kvat")
            S.barrier()
        cstamp(S, 35 + i)
    stamp(S, 7)
    tail = silu_tile(acc3, tmp, hb[0], h_store(sLineB, 1, 0, "h2"))
    emit_groups(S, tail[:-1])
    stamp(S, 16)
    S.wait_vm_tag("h1")
    stamp(S, 17)
    S.extend(tail[-1])
    S.raw("s_waitcnt lgkmcnt(0)", kind="wait")
    S.fence(vm=False, lgkm=True)
    S.barrier()
    S.extend(signal(G, 1))
    stamp(S, 8)
    fin = G.lab("fin")
    N = Stream()
    N.wait_vm_tag("h2")
    N.barrier()
    N.extend(signal(G, 2))
    not_p2(G, S, [N.ins], fin)
    S.extend(p2_poll_issue(G, 1))
    for n in range(12, 20):
        S.extend(g_step(n, UNITS_A[n]))
    S.wait_vm_tag("h2", *[f"W{n}" for n in range(6)])
    fpoll_check(G, S, vPo, s(14), vPv, 1)
    S.barrier()
    stamp(S, 9)
    S.extend(signal(G, 2))
    for n in range(16):
        S.extend(bload(n))
    return dict(units=UNITS_A, fin=fin, inq={}, endwait={})


def not_p2(G, S, groups, fin):
    skip = G.lab("nop2")
    S.op("s_cmp_lg_u32", sP2, 0)
    S.raw(f"s_cbranch_scc1 {skip}", reads=SCC.regs())
    S.push_state()
    for g in groups:
        S.extend(g)
    S.raw(f"s_branch {fin}", kind="ctrl")
    S.pop_state()
    S.label(skip)


def phase1B_rest(G, p2slot, accQ):
    S = G.S
    XR = XRAW
    acc2 = [v(XR, 16), v(XR + 16, 16)]
    ring = [v(XR + 32 + 4 * i, 4) for i in range(4)]
    kb = v(XR + 48, 8)
    p = v(P + 32, 16)
    sc = [v(P + 48), v(P + 49), v(P + 50), v(P + 51), v(P + 60), v(P + 61), v(P + 62), v(P + 63)]
    phi = v(P + 16, 16)
    tiles = [Tile(acc2[e], vF[e], [vStR[2 * e], vStR[2 * e + 1]], lambda c: p2slot[c], 0, 2048, 512) for e in range(2)]
    fq = Queue(features(accQ, kb, p, sc, phi, vPhiA, [Gap(10)]))
    if OPT.debug:
        D = Stream()
        dump(G, D, "phi", reglist(phi))
        fq.g.append(D.ins)
    p3slot = dict(p2slot)
    p3slot[6] = U(0)
    st = new_pass_state(tiles)
    for i in range(7):
        slots = pass_slots(tiles, ring, i, 3, lambda c: c <= i + 1, st)
        f = fq.take(fq.total / 7 + 1) if i < 6 else fq.rest()
        dm = []
        if i == 0:
            dm += g_line(6, sLineB, p3slot[6], "b6")
        if i >= 1:
            dm += g_line(i - 1, sLineB, p3slot[i - 1], f"b{i - 1}")
        if i in (2, 3):
            dm.append(g_step(i - 2, UNITS_B[i - 2]))
        S.extend(weave(slots, place(padded(f, 12), dm)))
        if i + 2 < 7:
            S.wait_vm_tag(f"a{i + 2}")
        if i == 6:
            S.wait_vm_tag("b0", "b1")
        S.barrier()
        cstamp(S, 28 + i)
    stamp(S, 6)
    if OPT.debug:
        dump(G, S, "acc2", reglist(acc2[0]) + reglist(acc2[1]))
    acc3 = [accQ, v(P + 32, 16)]
    tmp = v(XR + 48, 8)
    hb = [v(P + 52, 4), v(P + 56, 4)]
    tiles3 = [Tile(acc3[e], vF[e], [vStR[2 * e], vStR[2 * e + 1]], lambda c: p3slot[c], 0, 2048, 512) for e in range(2)]
    fq = Queue([Gap(2)] + silu_tile(acc2[0], tmp, hb[0], h_store(sLineA, 2, 0, "h1")) +
               silu_tile(acc2[1], tmp, hb[1], h_store(sLineA, 2, 1, "h1")))
    sq = Queue(p2_setup())
    st = new_pass_state(tiles3)
    KVL = [U(12), U(19)]
    koff, kpv = vD1, vD3
    for i in range(7):
        slots = pass_slots(tiles3, ring, i, 3, lambda c: c <= i + 1, st)
        f = fq.take(fq.total / 4 + 1) if i < 3 else fq.rest()
        if i >= 4:
            f = f + (sq.take(sq.total / 2 + 2) if i < 5 else sq.rest())
        dm = []
        if i <= 5:
            dm += [g_step(2 + 2 * i, UNITS_B[2 + 2 * i]), g_step(3 + 2 * i, UNITS_B[3 + 2 * i])]
        if i == 6:
            Z = Stream()
            Z.extend(signal(G, 1))
            Z.op("v_and_b32", koff, 15, vL)
            Z.op("v_lshlrev_b32", koff, 13, koff)
            Z.op("s_lshl_b32", sT1, sM, 10)
            Z.op("s_add_u32", sPoll, sT1, WS_FL)
            Z.extend(fpoll_issue(G, koff, sPoll, kpv))
            dm.insert(0, Z.ins)
        S.extend(weave(slots, place(padded(f, 12), dm)))
        if i + 2 < 7:
            S.wait_vm_tag(f"b{i + 2}")
        if i == 5:
            S.wait_vm_tag("h1")
        if i == 6:
            fpoll_check(G, S, koff, sPoll, kpv, 1)
        S.barrier()
        cstamp(S, 35 + i)
    stamp(S, 7)
    stamp(S, 15)
    S.op("s_lshl_b32", sT0, sM, 1)
    S.op("s_add_u32", sT0, sT0, sCh)
    S.op("s_lshl_b32", sT0, sT0, 13)
    S.op("s_lshl_b32", sT1, sTg, 11)
    S.op("s_add_u32", sT0, sT0, sT1)
    S.op("s_add_u32", sT0, sT0, WS_KV)
    S.op("s_mul_i32", sT2, sCh, KVL[1] - KVL[0])
    S.op("s_add_u32", sT2, sT2, sT1)
    S.op("s_add_u32", M0, sT2, KVL[0])
    S.op("s_mul_i32", sT2, sCh, KVL[1] - KVL[0])
    for k in range(2):
        S.dma(vL16, SWS, sT0, offset=1024 * k, mods="sc1", tag="kvl")
    S.op("s_add_u32", s(14), sT2, KVL[0])
    t0_ = silu_tile(acc3[0], tmp, hb[0], h_store(sLineB, 2, 0, "h2"))
    t1_ = silu_tile(acc3[1], tmp, hb[1], h_store(sLineB, 2, 1, "h2"))
    W = [g_step(n, UNITS_B[n]) for n in range(14, 18)]
    emit_groups(S, spread(t0_[:-1] + t1_[:-1], W))
    S.op("v_bfe_u32", vT2, vL, 4, 1)
    S.op("v_lshlrev_b32", vT2, 10, vT2)
    S.op("v_lshrrev_b32", vT3, 5, vL)
    S.op("v_lshl_add_u32", vT2, vT3, 6, vT2)
    S.op("v_and_b32", vT3, 15, vL)
    S.op("v_lshl_add_u32", vT2, vT3, 2, vT2)
    S.op("v_add_u32", vT2, s(14), vT2)
    S.op("v_add_u32", vT3, 128, vT2)
    S.extend(p2_poll_issue(G, 1))
    S.wait_vm_tag("kvl")
    S.extend(t0_[-1])
    S.extend(t1_[-1])
    stamp(S, 17)
    S.barrier()
    kvr = v(XR, 32)
    for beta in range(4):
        for ph in range(2):
            for pr in range(2):
                q = 4 * beta + 2 * ph + pr
                S.ds_read2st64(kvr[2 * q:2 * q + 2], vT3 if ph else vT2, 8 * beta + 2 * pr, 8 * beta + 2 * pr + 1)
    kvb = v(XR + 32, 16)
    for q in range(16):
        S.op("v_cvt_pk_bf16_f32", kvb[q], kvr[2 * q], kvr[2 * q + 1])
    D = v(P, 16)
    for k in range(4):
        S.mfma(D, kvb[4 * k:4 * k + 4], phi[4 * k:4 * k + 4], 0 if k == 0 else D)
    S.op("s_lshl_b32", sT1, sR, 2)
    S.op("s_add_u32", sT1, sT1, sTg)
    S.op("s_lshl_b32", sT1, sT1, 4)
    S.op("s_lshl_b32", sT2, sM, 1)
    S.op("s_add_u32", sT1, sT1, sT2)
    S.op("s_add_u32", sT1, sT1, sCh)
    S.op("s_lshl_b32", sT1, sT1, 11)
    S.op("s_add_u32", s(15), sT1, WS_O)
    fin = G.lab("fin")
    skip = G.lab("noh")
    den, t = vT0, vT1
    S.op("v_mov_b32", den, D[12])
    S.op("v_mov_b32", t, D[12])
    S.nop(1)
    S.op("v_permlane32_swap_b32", den, t)
    S.op("v_add_f32", t, 1e-6, t)
    S.op("v_rcp_f32", t, t)
    S.nop(1)
    for j in range(16):
        S.op("v_mul_f32", D[j], D[j], t)
    for j in range(12, 16):
        S.op("v_and_b32", D[j], vMask, D[j])
    ob = v(XR, 8)
    for q in range(8):
        S.op("v_cvt_pk_bf16_f32", ob[q], D[2 * q], D[2 * q + 1])
    stamp(S, 8)

    def ostore(S):
        S.buf_store("buffer_store_dwordx4", ob[0:4], vL16, SWS, s(15), mods="sc1", tag="ost")
        S.buf_store("buffer_store_dwordx4", ob[4:8], vL16, SWS, s(15), offset=1024, mods="sc1", tag="ost")
    N = Stream()
    ostore(N)
    N.wait_vm_tag("h2", "ost")
    N.barrier()
    N.extend(signal(G, 2))
    N.extend(signal(G, 3))
    not_p2(G, S, [N.ins], fin)
    S.wait_vm_tag(*[f"W{n}" for n in range(6)])
    fpoll_check(G, S, vPo, s(14), vPv, 1)
    S.raw("s_waitcnt lgkmcnt(0)", kind="wait")
    S.fence(vm=False, lgkm=True)
    S.barrier()
    stamp(S, 9)
    for n in range(8):
        S.extend(bload(n))
    ostore(S)
    for n in range(8, 16):
        S.extend(bload(n))
    return dict(units=UNITS_B, fin=fin,
                inq={0: [g_step(18, UNITS_B[18]), g_step(19, UNITS_B[19])], 1: [signal(G, 2)], 2: [signal(G, 3)]},
                endwait={0: ["h2"], 1: ["ost"]})


def phase2(G, info):
    S = G.S
    units, fin = info["units"], info["fin"]
    unit = lambda n: units[n % 20]
    sKq, sU = sTg, sCh
    off, pv = vPo, vPv
    xr = v(24, 4)
    accO = [v(32, 16), v(48, 16)]
    accS = [v(64, 16), v(80, 16)]
    ring = [v(96 + 4 * i, 4) for i in range(8)]
    S.buf_load("buffer_load_dwordx2", xr[0:2], vXo, SX, 0, tag="xr")
    S.buf_load("buffer_load_dwordx2", xr[2:4], vXo, SX, 0, offset=16, tag="xr")
    stamp(S, 10)
    cstamp(S, 42)
    seq = [(n, c) for n in range(36) for c in range(2)]
    rp = 0

    def areads(S_, j):
        n, c = seq[j]
        dst = ring[j % 8]
        base = U(unit(n))
        ad = vW[base >> 16][c]
        o_ = base & 0xFFFF
        S_.ds_read("ds_read_b64_tr_b16", dst[0:2], ad, offset=o_)
        S_.ds_read("ds_read_b64_tr_b16", dst[2:4], ad, offset=o_ + 1024)

    RO = [units[n] for n in range(8)]
    RS = [units[n] for n in (16, 17, 18, 19, 8, 9, 10, 11)]

    def red_addr(S_, table, dst4, rd):
        S_.op("s_lshl_b32", sT1, sKq, 11)
        for pi in range(4):
            S_.op("s_add_u32", sT2, sT1, U(table[4 * CH + pi]))
            S_.op("v_add_u32", dst4[pi], sT2, vL16)
        S_.op("s_mov_b32", sT2, U(table[4 * CH]))
        for pi in range(1, 4):
            S_.op("s_cmp_eq_u32", sKq, pi)
            S_.op("s_cselect_b32", sT2, U(table[4 * CH + pi]), sT2)
        S_.op("v_add_u32", rd, sT2, vL16)

    vRw = [v(14), v(15), v(16), v(17)]
    vRr = v(18)

    def red_put(acc):
        R = Stream()
        for pi in range(4):
            c, e = pi >> 1, pi & 1
            for hh in range(2):
                R.ds_write("ds_write_b128", vRw[pi], acc[c][8 * e + 4 * hh:8 * e + 4 * hh + 4],
                           offset=hh * 1024, tag="red")
        return singles(R)

    og = v(32, 8)
    tmp = v(40, 8)
    xf = v(48, 8)
    for q in range(9):
        slots = []
        for j in range(8 * q, 8 * q + 8):
            S_ = Stream()
            while rp <= min(j + 5, 71) and seq[rp][0] <= 4 * q + 5:
                areads(S_, rp)
                rp += 1
            n, c = seq[j]
            acc = accO if n < 28 else accS
            S_.mfma(acc[c], ring[j % 8], bfrag(n), 0 if n in (0, 28) else acc[c])
            slots.append(S_.ins)
        fill = []
        for n in range(max(20, 4 * q + 16), min(4 * q + 20, 36)):
            if q >= 1:
                fill.append(g_step(n, unit(n)))
        pre = Stream()
        fill += info["inq"].get(q, [])
        if q == 1:
            fill.insert(0, p2_poll_issue(G, 2))
        if q == 2:
            fill = [bload(n) for n in range(16, 28)] + fill
        if q == 4:
            fill.insert(0, p2_poll_issue(G, 3))
        if q == 5:
            fill += [bload(n) for n in range(28, 36)]
        if q == 6:
            R = Stream()
            red_addr(R, RO, vRw, vRr)
            fill.append(R.ins)
        if q == 7:
            fill += [Gap(3)] + red_put(accO)
        if q == 8:
            R = Stream()
            o4 = [v(32, 8), v(40, 8), v(48, 8), v(56, 8)]
            for src in range(4):
                for hh in range(2):
                    R.ds_read("ds_read_b128", o4[src][4 * hh:4 * hh + 4], vRr, offset=src * 2048 + hh * 1024)
            for j in range(8):
                R.op("v_add_f32", o4[0][j], o4[0][j], o4[1][j])
            for j in range(8):
                R.op("v_add_f32", o4[2][j], o4[2][j], o4[3][j])
            for j in range(8):
                R.op("v_add_f32", o4[0][j], o4[0][j], o4[2][j])
            for j in range(8):
                R.op("v_mul_f32", tmp[j], sIL, og[j])
            for j in range(8):
                R.op("v_exp_f32", tmp[j], tmp[j])
            for j in range(8):
                R.op("v_fma_f32", tmp[j], tmp[j], sC3, sC3)
            for j in range(8):
                R.op("v_rcp_f32", tmp[j], tmp[j])
            for j in range(8):
                R.op("v_mul_f32", og[j], og[j], tmp[j])
            for qq in range(4):
                R.op("v_lshlrev_b32", xf[2 * qq], 16, xr[qq])
                R.op("v_and_b32", xf[2 * qq + 1], sHi, xr[qq])
            fill += singles(R)
            R = Stream()
            red_addr(R, RS, vRw, v(28))
            fill.append(R.ins)
        S.extend(pre.ins)
        ismem = lambda x: (not isinstance(x, Gap)) and any(i.kind in ("dma", "vm_load", "vm_store") for i in x)
        mem = [x for x in fill if ismem(x)]
        oth = [x for x in fill if not ismem(x)]
        if len(mem) > 8:
            S.extend(weave(slots, spread(padded(oth, 12), mem)))
        else:
            S.extend(weave(slots, place(padded(oth, 12), mem)))
        nxt = [f"W{n}" for n in range(4 * q + 6, min(4 * q + 10, 36))]
        if nxt:
            S.wait_vm_tag(*nxt)
        if q == 7:
            S.wait_lgkm_tag("red")
        if info["endwait"].get(q):
            S.wait_vm_tag(*info["endwait"][q])
        if q == 1:
            fpoll_check(G, S, off, s(14), pv, 1)
        if q == 4:
            stamp(S, 12)
            fpoll_check(G, S, off, s(14), pv, 1, mask=0xAAAA)
            stamp(S, 52)
        if q < 8:
            S.barrier()
        cstamp(S, 43 + q)
    stamp(S, 11)
    emit_groups(S, red_put(accS))
    S.wait_lgkm_tag("red")
    S.barrier()
    stamp(S, 13)
    s4 = [v(96, 8), v(104, 8), v(112, 8), v(120, 8)]
    for src in range(4):
        for hh in range(2):
            S.ds_read("ds_read_b128", s4[src][4 * hh:4 * hh + 4], v(28), offset=src * 2048 + hh * 1024)
    for j in range(8):
        S.op("v_add_f32", s4[0][j], s4[0][j], s4[1][j])
    for j in range(8):
        S.op("v_add_f32", s4[2][j], s4[2][j], s4[3][j])
    for j in range(8):
        S.op("v_add_f32", s4[0][j], s4[0][j], s4[2][j])
    if OPT.debug:
        dump(G, S, "sv", reglist(s4[0]) + reglist(og))
    for j in range(8):
        S.op("v_fma_f32", s4[0][j], s4[0][j], og[j], xf[j])
    yb = v(64, 4)
    for q in range(4):
        S.op("v_cvt_pk_bf16_f32", yb[q], s4[0][2 * q], s4[0][2 * q + 1])
    S.nop(1)
    S.op("v_permlane32_swap_b32", yb[0], yb[2])
    S.op("v_permlane32_swap_b32", yb[1], yb[3])
    S.buf_store("buffer_store_dwordx4", yb, vOut, SOUT, 0, tag="out")
    S.label(fin)
    if OPT.hstamps:
        S.wait_all()
        stamp(S, 14)
    if OPT.stamps:
        S.wait_all()
        stamp(S, 14)
        stamp_flush(S)
    S.raw("s_endpgm", kind="ctrl")


def build(code_bytes=32768):
    global CH
    out = {}
    stats = {}
    dumps = None
    pro = None
    for ty in (0, 1):
        for ch in (0, 1):
            CH = ch
            G = Gen(1000 * (2 * ty + ch + 1))
            prologue(G, code_bytes)
            G.S.op("s_lshl_b32", sT1, sTy, 1)
            G.S.op("s_add_u32", sT1, sT1, sCh)
            G.S.op("s_cmp_eq_u32", sT1, 1)
            G.S.raw("s_cbranch_scc1 L_PROG1", reads=SCC.regs())
            G.S.op("s_cmp_eq_u32", sT1, 2)
            G.S.raw("s_cbranch_scc1 L_PROG2", reads=SCC.regs())
            G.S.op("s_cmp_eq_u32", sT1, 3)
            G.S.raw("s_cbranch_scc1 L_PROG3", reads=SCC.regs())
            G.S.align8()
            G.S.label("L_SPLIT")
            info = phase1(G, ty == 0)
            phase2(G, info)
            l, st = finalize(G.S, align8=OPT.align8)
            k = l.index("L_SPLIT:")
            if pro is None:
                pro = l[:k]
            else:
                assert pro == l[:k]
            out[2 * ty + ch] = l[k + 1:]
            stats["AB"[ty] + str(ch)] = st
            dumps = G.dumps
    body = list(pro) + out[0]
    for k in (1, 2, 3):
        body += [".p2align 3", f"L_PROG{k}:"] + out[k]
    body += ["L_END:", "    s_endpgm", "L_CODE_END:"]
    return body, stats, dumps


HEADER = """; Kernarg layout for this problem (88 bytes, ptrs only, base s[0:1]):
; @launch grid=(256,1,1) block=(512,1,1) lds=163840
"""


def full_text(body):
    k = KNAME + "_kernel"
    t = HEADER
    t += '.amdgcn_target "amdgcn-amd-amdhsa--gfx950"\n.text\n'
    t += f".globl {k}\n.p2align 8\n.type {k},@function\n{k}:\n"
    t += "\n".join(body) + "\n"
    t += f""".section .rodata,"a"
.p2align 6
.amdhsa_kernel {k}
  .amdhsa_next_free_vgpr 256
  .amdhsa_next_free_sgpr 102
  .amdhsa_accum_offset 144
  .amdhsa_group_segment_fixed_size 0
  .amdhsa_kernarg_size 88
  .amdhsa_user_sgpr_count 2
  .amdhsa_user_sgpr_kernarg_segment_ptr 1
  .amdhsa_system_sgpr_workgroup_id_x 1
  .amdhsa_float_denorm_mode_32 3
  .amdhsa_float_denorm_mode_16_64 3
.end_amdhsa_kernel
"""
    return t


if __name__ == "__main__":
    import argparse, json
    ap = argparse.ArgumentParser()
    ap.add_argument("-o", default="out.s")
    ap.add_argument("--debug", action="store_true")
    ap.add_argument("--align", action="store_true")
    ap.add_argument("--stamps", action="store_true")
    ap.add_argument("--nopf", action="store_true")
    ap.add_argument("--nf", type=int, default=4)
    ap.add_argument("--hstamps", action="store_true")
    ap.add_argument("--sleep", type=int, default=2)
    ap.add_argument("--kv", default="atomic")
    args = ap.parse_args()
    OPT.debug = args.debug
    OPT.align8 = args.align
    OPT.stamps = args.stamps
    OPT.prefetch_code = not args.nopf
    OPT.nf = args.nf
    OPT.hstamps = args.hstamps
    OPT.sleep = args.sleep
    OPT.kvmode = args.kv
    body, stats, dumps = build()
    tot = sum(stats[k]["bytes"] - 2048 for k in stats)
    body, stats, dumps = build(code_bytes=(tot - 1024) // 128 * 128)
    open(args.o, "w").write(full_text(body))
    json.dump({"dumpsA": dumps, "dumps2": []}, open(args.o + ".json", "w"))
    for k in stats:
        print(k, stats[k])
```
